```python
import torch

def _softmax(x, axis=-1):
    return torch.softmax(x, dim=axis)
def _gelu(x):
    return torch.nn.functional.gelu(x, approximate="tanh")
def _silu(x):
    return torch.nn.functional.silu(x)
def _sigmoid(x):
    return torch.sigmoid(x)
def _layernorm(x, axis=-1, eps=1e-5):
    m = x.mean(dim=axis, keepdim=True)
    v = x.var(dim=axis, keepdim=True, unbiased=False)
    return (x - m) / torch.sqrt(v + eps)
def _scatter_add(tgt, idx, src, axis=0):
    return tgt.clone().index_add_(axis, idx, src)
def _segment_sum(src, seg, n):
    out = torch.zeros((n,) + src.shape[1:], dtype=src.dtype)
    return out.index_add_(0, seg, src)
def _pad(x, pw):
    flat = tuple(v for pair in reversed(pw) for v in pair)
    return torch.nn.functional.pad(x, flat)

kernel_name = 'standalone__detection_seg_dino__vision'

def setup_inputs():

    _w = (lambda a: (lambda t: t.to(torch.bfloat16) if t.is_floating_point() else t)(torch.as_tensor(a)))
    H = W = (384 // 2) * 2
    C = 96
    Nq = 16
    sc = C ** -0.5
    return {
        "q": _w((lambda *s: torch.randn(*s, dtype=torch.bfloat16) * 0.05)(1, Nq, C)),
        "f0": _w((lambda *s: torch.randn(*s, dtype=torch.bfloat16) * 0.8)(1, H, W, C)),
        "f1": _w((lambda *s: torch.randn(*s, dtype=torch.bfloat16) * 0.8)(1, H // 2, W // 2, C)),
        "wq": _w((lambda *s: torch.randn(*s, dtype=torch.bfloat16) * 3.2)(C, C) * sc),
        "wk": _w((lambda *s: torch.randn(*s, dtype=torch.bfloat16) * 3.2)(C, C) * sc),
        "wv": _w((lambda *s: torch.randn(*s, dtype=torch.bfloat16) * 0.8)(C, C) * sc),
        "wo": _w((lambda *s: torch.randn(*s, dtype=torch.bfloat16) * 0.8)(C, C) * sc),
    }

def reference(q, f0, f1, wq, wk, wv, wo):
    B, H, W, C = f0.shape
    f1u = (lambda x, n, axis: torch.repeat_interleave(x, n, dim=axis))((lambda x, n, axis: torch.repeat_interleave(x, n, dim=axis))(f1, 2, axis=1), 2, axis=2)
    fused = f0 + f1u
    feats = _layernorm(fused.reshape(B, H * W, C), axis=-1)
    qn = _layernorm(q, axis=-1)
    Q = torch.einsum("bnc,cd->bnd", qn, wq)
    K = torch.einsum("bmc,cd->bmd", feats, wk)
    V = torch.einsum("bmc,cd->bmd", feats, wv)
    scale = C ** -0.5
    logits = torch.einsum("bnd,bmd->bnm", Q, K) * scale
    attn = _softmax(logits, axis=-1)
    ctx = torch.einsum("bnm,bmd->bnd", attn, V)
    return q + torch.einsum("bnd,dc->bnc", ctx, wo)
```

```python
import re

def _expand(tok):
    tok = tok.strip()
    tok = tok.lstrip('-')
    m = re.fullmatch(r'(?:abs\(|\|)?([vsa])\[(\d+):(\d+)\]\)?\|?', tok)
    if m:
        return {f"{m.group(1)}{i}" for i in range(int(m.group(2)), int(m.group(3)) + 1)}
    m = re.fullmatch(r'(?:abs\(|\|)?([vsa])(\d+)\)?\|?', tok)
    if m:
        return {f"{m.group(1)}{m.group(2)}"}
    if tok in ('vcc', 'vcc_lo', 'vcc_hi'):
        return {'vcc'}
    if tok in ('exec', 'exec_lo', 'exec_hi'):
        return {'exec'}
    if tok == 'm0':
        return {'m0'}
    return set()

TRANS = ('v_exp_f32', 'v_log_f32', 'v_rcp_f32', 'v_rsq_f32', 'v_sqrt_f32', 'v_sin_f32', 'v_cos_f32', 'v_rcp_iflag_f32')

class Ins:
    def __init__(self, text):
        self.text = text
        t = text.split(';')[0].strip()
        self.is_label = t.endswith(':')
        self.is_dir = t.startswith('.')
        self.op = ''
        self.w = set(); self.r = set()
        self.srcc = set(); self.srcab = set()
        self.kind = 'other'
        if self.is_label or self.is_dir or not t:
            self.kind = 'none'
            return
        parts = t.split(None, 1)
        op = parts[0]; self.op = op
        rest = parts[1] if len(parts) > 1 else ''
        ops = []; depth = 0; cur = ''
        for ch in rest:
            if ch in '[(': depth += 1
            if ch in '])': depth -= 1
            if ch == ',' and depth == 0:
                ops.append(cur); cur = ''
            else:
                cur += ch
        if cur.strip(): ops.append(cur)
        clean = []
        for o in ops:
            o = o.strip()
            clean.append(o.split()[0] if o else o)
        self.mods = rest
        ops = clean
        R = [_expand(o) for o in ops]
        self.dpp = ('_dpp' in op) or ('quad_perm' in rest) or ('row_' in rest)
        if op.startswith('v_mfma'):
            self.kind = 'mfma'
            self.w = R[0]; self.srcab = R[1] | R[2]; self.srcc = R[3]; self.r = self.srcab | self.srcc
            self.passes = 8 if '32x32' in op else (2 if '4x4x4' in op else 4)
        elif op.startswith('v_cmpx'):
            self.kind = 'valu'; self.w = R[0] | {'exec'}; self.r = set().union(*R[1:])
        elif op.startswith('v_cmp'):
            self.kind = 'valu'; self.w = R[0]; self.r = set().union(*R[1:])
        elif op.startswith('v_permlane') and 'swap' in op:
            self.kind = 'valu'; self.w = R[0] | R[1]; self.r = R[0] | R[1]
        elif op.startswith('v_add_co') or op.startswith('v_sub_co') or op.startswith('v_addc_co') or op.startswith('v_subb_co') or op.startswith('v_div_scale') or op.startswith('v_mad_u64'):
            self.kind = 'valu'; self.w = R[0] | R[1]; self.r = set().union(*R[2:])
        elif op.startswith('v_'):
            self.kind = 'valu'; self.w = R[0]; self.r = set().union(*R[1:]) if len(R) > 1 else set()
            if op.startswith('v_fmac') or op.startswith('v_dot2c') or op.startswith('v_pk_fmac') or op.startswith('v_writelane') or '_dpp' in op or self.dpp or '_sdwa' in op:
                self.r |= R[0]
            if op.startswith('v_cndmask') and len(R) == 3:
                self.r |= {'vcc'}
        elif op.startswith('ds_'):
            self.kind = 'ds'
            if op.startswith('ds_read') or '_rtn' in op or op.startswith('ds_bpermute') or op.startswith('ds_permute') or op.startswith('ds_swizzle'):
                self.w = R[0]; self.r = set().union(*R[1:])
            else:
                self.r = set().union(*R)
        elif op.startswith('buffer_') or op.startswith('global_') or op.startswith('flat_'):
            self.kind = 'vmem'
            lds = bool(re.search(r'\blds\b', rest)) or '_lds_' in op
            self.ldsdma = lds
            if op in ('buffer_wbl2', 'buffer_inv'):
                pass
            elif ('load' in op) and not lds:
                self.w = R[0]; self.r = set().union(*R[1:])
            elif 'atomic' in op and 'sc0' in rest:
                self.w = R[0]; self.r = set().union(*R[1:])
            else:
                self.r = set().union(*R)
            if lds: self.r |= {'m0'}
            self.widestore = ('store' in op) and ('x3' in op or 'x4' in op)
            if self.widestore:
                self.sdata = R[0] if op.startswith('buffer_') else R[1]
        elif op.startswith('s_'):
            self.kind = 'salu'
            if op.startswith('s_cmp') or op.startswith('s_cbranch') or op.startswith('s_branch') or op in ('s_waitcnt', 's_barrier', 's_nop', 's_endpgm', 's_sleep', 's_setprio', 's_set_gpr_idx_off', 's_set_gpr_idx_on', 's_setreg_b32', 's_bitcmp1_b32', 's_bitcmp0_b32'):
                self.r = set().union(*R) if R else set()
            else:
                self.w = R[0] if R else set(); self.r = set().union(*R[1:]) if len(R) > 1 else set()
                if 'saveexec' in op: self.w |= {'exec'}
    def states(self):
        if self.kind == 'none': return 0
        if self.op == 's_nop':
            return int(self.text.split()[1].split(';')[0], 0) + 1
        return 1

def need(p, c):
    n = 0
    isv = lambda x: x.kind == 'valu'
    base = lambda o: re.sub(r'_(e32|e64|dpp|sdwa)$', '', o)
    if p.kind == 'valu':
        vw = {x for x in p.w if x[0] in 'va' and x != 'vcc'}
        sw = {x for x in p.w if x[0] == 's' or x == 'vcc'}
        dl = p.op.startswith('v_dot')
        if dl:
            if vw & (c.r | c.w):
                if base(c.op) == base(p.op):
                    cops = c.text.split(';')[0].split(None, 1)[1].split(',')
                    if c.op.startswith('v_dot2c'):
                        ab = _expand(cops[1].strip().split()[0]) | _expand(cops[2].strip().split()[0])
                    else:
                        ab = _expand(cops[1].strip().split()[0]) | _expand(cops[2].strip().split()[0])
                    if vw & ab: n = max(n, 3)
                    elif (vw & c.w) and not (vw & c.r): n = max(n, 3)
                else:
                    n = max(n, 3)
        if c.kind == 'mfma' and (vw & c.r): n = max(n, 2)
        if c.kind == 'mfma' and 'exec' in p.w: n = max(n, 4)
        if isv(c) and c.dpp and (vw & c.r): n = max(n, 2)
        if isv(c) and c.dpp and 'exec' in p.w: n = max(n, 5)
        if c.op.startswith('v_permlane') and (vw & c.r): n = max(n, 2)
        if c.op.startswith('v_permlane') and 'exec' in p.w: n = max(n, 4)
        if (c.op.startswith('v_readlane') or c.op.startswith('v_readfirstlane')) and (vw & c.r): n = max(n, 1)
        if (c.op.startswith('v_readlane') or c.op.startswith('v_readfirstlane') or c.op.startswith('v_writelane')) and 'exec' in p.w: n = max(n, 4)
        if base(p.op) in TRANS and c.kind in ('valu', 'mfma') and (vw & c.r): n = max(n, 1)
        if ('sdwa' in p.op or 'op_sel' in p.mods) and isv(c) and (vw & (c.r | c.w)): n = max(n, 1)
        if sw:
            if isv(c) and (sw & c.r):
                n = max(n, 4 if (c.op.startswith('v_readlane') or c.op.startswith('v_writelane') or c.op.startswith('v_div_fmas')) else 2)
            if c.kind == 'vmem' and (sw & c.r): n = max(n, 5)
            if c.kind == 'salu' and (sw & c.r): n = max(n, 1)
        if 'exec' in p.w and isv(c) and 'exec' in c.r: n = max(n, 2)
    if p.kind == 'mfma':
        P = p.passes
        tabAB = {2: 5, 4: 8, 8: 12, 16: 20}[P]
        tabC = {2: 4, 4: 6, 8: 10, 16: 18}[P]
        if c.kind == 'mfma':
            if p.w & c.srcab: n = max(n, tabAB)
            if p.w & c.srcc:
                if c.srcc == p.w and c.passes == P: n = max(n, 2 if P == 2 else 0)
                else: n = max(n, tabC)
            elif p.w & c.w: n = max(n, tabAB)
        elif c.kind in ('valu', 'ds', 'vmem'):
            if p.w & (c.r | c.w): n = max(n, tabAB)
        if isv(c) and (p.srcc & c.w): n = max(n, {2: 1, 4: 3, 8: 7, 16: 15}[P])
    if p.kind == 'salu' and 'm0' in p.w and c.kind == 'vmem' and getattr(c, 'ldsdma', False): n = max(n, 1)
    if p.kind == 'salu' and 'm0' in p.w and c.op.startswith('s_set_gpr_idx'): n = max(n, 1)
    if p.kind == 'vmem' and getattr(p, 'widestore', False) and (p.sdata & c.w): n = max(n, 2)
    return n

class Asm:
    def __init__(self):
        self.lines = []
    def __call__(self, text):
        for l in text.strip('\n').split('\n'):
            l = l.strip()
            if l: self.lines.append(l)
    def finish(self):
        out = []
        for l in self.lines:
            c = Ins(l)
            if c.kind != 'none':
                dist = 0; req = 0
                for p in reversed(out):
                    if p.kind == 'none':
                        continue
                    n = need(p, c)
                    if n > dist: req = max(req, n - dist)
                    dist += p.states()
                    if dist >= 20: break
                while req > 0:
                    k = min(req, 16)
                    out.append(Ins(f"s_nop {k-1}"))
                    req -= k
            out.append(c)
        txt = []
        for i in out:
            if i.is_label or i.is_dir: txt.append(i.text)
            else: txt.append("    " + i.text)
        return "\n".join(txt) + "\n"
```

```python
import sys
from asmgen import Asm

NAME = "standalone__detection_seg_dino__vision"
HDR = open("cdna_kernels/%s.s.ref" % NAME).read().split("; Override launch")[0]

XS = 208
NROW = 576
PB = 0
SC = PB + 18432
SM = SC + 2304
QB = SM + 2304
QKB = QB + 16 * XS
AB = QKB + 16 * XS
MB = AB + 3072
XB = MB + 64
WQ, WO, WV, WK = 0, 18432, 36864, 55296
LDS_TOTAL = XB + NROW * XS + 16
CONST = 96 ** -0.5 * 1.4426950408889634
import struct
def f2u(f): return struct.unpack('<I', struct.pack('<f', f))[0]

ML_OFF = 96 * 256 * 64

def srd(a, d, base, nbytes):
    a(f"""
    s_mov_b32 s{d}, s{base}
    s_and_b32 s{d+1}, s{base+1}, 0xffff
    s_mov_b32 s{d+2}, {nbytes}
    s_mov_b32 s{d+3}, 0x00020000
    """)

def crossg_sum(a, v, t):
    a(f"""
    v_mov_b32 v{t}, v{v}
    v_permlane32_swap_b32 v{v}, v{t}
    v_add_f32 v{v}, v{v}, v{t}
    v_mov_b32 v{t}, v{v}
    v_permlane16_swap_b32 v{v}, v{t}
    v_add_f32 v{v}, v{v}, v{t}
    """)

def sd_mimic(a, var, t):
    a(f"""
    v_max_f32 v{var}, 0, v{var}
    v_cvt_pk_bf16_f32 v{var}, v{var}, v{var}
    v_and_b32 v{var}, 0xffff0000, v{var}
    v_add_f32 v{var}, 0x{f2u(1e-5):08x}, v{var}
    v_cvt_pk_bf16_f32 v{var}, v{var}, v{var}
    v_and_b32 v{var}, 0xffff0000, v{var}
    v_sqrt_f32 v{var}, v{var}
    v_cvt_pk_bf16_f32 v{t}, v{var}, v{var}
    v_and_b32 v{var}, 0xffff0000, v{t}
    """)

def gen_main(stamps=False):
    a = Asm()
    sW = 3
    sF0, sF1, sQ, sWQ, sWK, sWV, sWO, sWS = 36, 40, 44, 48, 52, 56, 60, 64
    sLO, sHI, sONE = 68, 69, 70
    sOF0a, sOF0b, sOF1, sT0, sT1, sU = 71, 72, 73, 74, 75, 76
    sM0, sM1 = 78, 80
    vL, vN, vG, vTQ, vQD = 1, 2, 3, 4, 5
    vAf0, vAf1, vAlin, vAq = 6, 7, 8, 9
    vAfrag = 10
    vAtr = 11
    vAxw = 12
    vAxr = 13
    vAst = 14
    vAstep = 15
    vAsr = 16
    vRS = 17
    vT0, vT1, vT2, vT3 = 18, 19, 20, 21
    vS1, vS2, vS1b, vS2b = 22, 23, 24, 25
    vMX = 26
    vAw = 27
    QK = 28
    WVO = 40
    S = 52
    C1 = 68
    F = 84
    R1 = 108
    R0 = 120
    RQ = C1
    NV = 168
    a(f"""
    s_cmp_ge_u32 s2, 256
    s_cbranch_scc1 L_end
    s_load_dwordx16 s[16:31], s[0:1], 0
    s_load_dwordx4 s[32:35], s[0:1], 64
    v_and_b32 v{vL}, 63, v0
    v_lshrrev_b32 v{vT0}, 6, v0
    v_and_b32 v{vN}, 15, v{vL}
    v_readfirstlane_b32 s{sW}, v{vT0}
    v_lshrrev_b32 v{vG}, 4, v{vL}
    v_lshrrev_b32 v{vTQ}, 2, v{vL}
    v_and_b32 v{vQD}, 3, v{vL}
    v_lshlrev_b32 v{vT0}, 4, v{vQD}
    v_mul_u32_u24 v{vAf1}, 192, v{vTQ}
    v_lshl_add_u32 v{vAf0}, v{vAf1}, 1, v{vT0}
    v_add_u32 v{vAf1}, v{vAf1}, v{vT0}
    v_lshlrev_b32 v{vAlin}, 4, v{vL}
    v_mul_u32_u24 v{vAq}, 192, v{vN}
    v_lshl_add_u32 v{vAq}, v{vG}, 4, v{vAq}
    s_mul_i32 s{sU}, s2, 9
    s_add_u32 s{sU}, s{sU}, s{sW}
    s_mul_i32 s{sOF1}, s{sU}, 3072
    s_mul_hi_u32 s{sT0}, s{sU}, 0x15555556
    s_mul_i32 s{sT1}, s{sT0}, 12
    s_sub_u32 s{sT1}, s{sU}, s{sT1}
    s_mul_i32 s{sOF0a}, s{sT0}, 147456
    s_mul_i32 s{sT1}, s{sT1}, 6144
    s_add_u32 s{sOF0a}, s{sOF0a}, s{sT1}
    s_add_u32 s{sOF0b}, s{sOF0a}, 73728
    s_lshl_b32 s{sT0}, s{sW}, 11
    s_mov_b32 s{sLO}, 0x00003f80
    s_mov_b32 s{sHI}, 0x3f800000
    s_mov_b32 s{sONE}, 0x3f803f80
    s_waitcnt lgkmcnt(0)
    """)
    srd(a, sQ, 16, 3072)
    srd(a, sWQ, 22, 18432); srd(a, sWK, 24, 18432); srd(a, sWV, 26, 18432); srd(a, sWO, 28, 18432)
    srd(a, sF1, 20, 7077888); srd(a, sF0, 18, 28311552)
    for kk in range(3):
        a(f"buffer_load_dwordx4 v[{RQ+4*kk}:{RQ+4*kk+3}], v{vAq}, s[{sQ}:{sQ+3}], 0 offen offset:{64*kk}")
    for (sr, base) in ((sWQ, WQ), (sWK, WK), (sWV, WV), (sWO, WO)):
        a(f"""
        s_add_u32 m0, s{sT0}, {XB+base}
        buffer_load_dwordx4 v{vAlin}, s[{sr}:{sr+3}], s{sT0} offen lds
        buffer_load_dwordx4 v{vAlin}, s[{sr}:{sr+3}], s{sT0} offen offset:1024 lds
        """)
    for j in range(3):
        a(f"buffer_load_dwordx4 v[{R1+4*j}:{R1+4*j+3}], v{vAf1}, s[{sF1}:{sF1+3}], s{sOF1} offen offset:{64*j}")
    for T in range(4):
        so = sOF0a if T < 2 else sOF0b
        for j in range(3):
            r = R0 + 12 * T + 4 * j
            a(f"buffer_load_dwordx4 v[{r}:{r+3}], v{vAf0}, s[{sF0}:{sF0+3}], s{so} offen offset:{(T&1)*192+64*j}")
    srd(a, sWS, 34, 0x10000000)
    a(f"""
    v_mul_u32_u24 v{vAfrag}, {XS}, v{vN}
    v_lshl_add_u32 v{vAfrag}, v{vG}, 4, v{vAfrag}
    v_lshrrev_b32 v{vT0}, 2, v{vN}
    v_lshl_add_u32 v{vT0}, v{vG}, 3, v{vT0}
    v_mul_u32_u24 v{vAtr}, 192, v{vT0}
    v_lshl_add_u32 v{vAtr}, v{vQD}, 3, v{vAtr}
    s_lshl_b32 s{sT1}, s{sW}, 5
    s_add_u32 s{sT1}, s{sT1}, {XB}
    v_add_u32 v{vAtr}, s{sT1}, v{vAtr}
    s_mul_i32 s{sT1}, s{sW}, {64*XS}
    s_add_u32 s{sT1}, s{sT1}, {XB}
    v_mul_u32_u24 v{vAxw}, {XS}, v{vTQ}
    v_add_u32 v{vAxw}, s{sT1}, v{vAxw}
    v_add_u32 v{vT1}, 192, v{vAxw}
    v_lshl_add_u32 v{vAxw}, v{vQD}, 4, v{vAxw}
    v_add_u32 v{vAxr}, s{sT1}, v{vAfrag}
    s_lshl_b32 s{sT1}, s{sW}, 8
    v_lshlrev_b32 v{vT0}, 2, v{vTQ}
    v_add_u32 v{vT0}, s{sT1}, v{vT0}
    v_mul_u32_u24 v{vT2}, {SM-SC}, v{vQD}
    v_add3_u32 v{vT0}, v{vT0}, v{vT2}, 0
    v_add_u32 v{vT0}, {SC}, v{vT0}
    v_cmp_gt_u32 s[{sM0}:{sM0+1}], 2, v{vQD}
    v_cmp_eq_u32 s[{sM1}:{sM1+1}], 0, v{vQD}
    v_cndmask_b32 v{vAst}, v{vT1}, v{vT0}, s[{sM0}:{sM0+1}]
    v_mov_b32 v{vT1}, {16*XS}
    v_mov_b32 v{vT0}, 64
    v_cndmask_b32 v{vAstep}, v{vT1}, v{vT0}, s[{sM0}:{sM0+1}]
    v_lshlrev_b32 v{vAsr}, 4, v{vG}
    v_add_u32 v{vAsr}, s{sT1}, v{vAsr}
    v_lshlrev_b32 v{vAw}, 2, v{vN}
    v_mov_b32 v{vT0}, 0xff800000
    ds_write_b32 v{vAw}, v{vT0} offset:{MB}
    """)
    a(f"""
    s_waitcnt vmcnt(23)
    v_mov_b32 v{vS1}, 0
    v_mov_b32 v{vS2}, 0
    """)
    for i in range(12):
        a(f"v_dot2c_f32_bf16 v{vS1}, s{sONE}, v{RQ+i}")
        a(f"v_dot2c_f32_bf16 v{vS2}, v{RQ+i}, v{RQ+i}")
    crossg_sum(a, vS1, vT0)
    crossg_sum(a, vS2, vT0)
    a(f"""
    v_mul_f32 v{vS1}, 0x{f2u(1/96):08x}, v{vS1}
    v_mul_f32 v{vT0}, v{vS1}, v{vS1}
    v_mov_b32 v{vT1}, 0x{f2u(1/96):08x}
    v_fma_f32 v{vS2}, v{vS2}, v{vT1}, -v{vT0}
    """)
    sd_mimic(a, vS2, vT0)
    a(f"""
    v_rcp_f32 v{vS2}, v{vS2}
    v_sub_f32 v{vS1}, 0, v{vS1}
    """)
    for i in range(12):
        a(f"v_dot2_f32_bf16 v{F+2*i}, v{RQ+i}, s{sLO}, v{vS1}")
        a(f"v_dot2_f32_bf16 v{F+2*i+1}, v{RQ+i}, s{sHI}, v{vS1}")
    for i in range(12):
        a(f"v_mul_f32 v{F+2*i}, v{F+2*i}, v{vS2}")
        a(f"v_mul_f32 v{F+2*i+1}, v{F+2*i+1}, v{vS2}")
        a(f"v_cvt_pk_bf16_f32 v{RQ+i}, v{F+2*i}, v{F+2*i+1}")
    a(f"""
    s_waitcnt vmcnt(15) lgkmcnt(0)
    s_barrier
    s_cmp_ge_u32 s{sW}, 6
    s_cbranch_scc1 L_skip_p3
    """)
    for kk in range(3):
        for h in range(2):
            r = QK + 4 * kk + 2 * h
            a(f"ds_read_b64_tr_b16 v[{r}:{r+1}], v{vAtr} offset:{WQ + kk*6144 + h*768}")
    for kk in range(3):
        for h in range(2):
            r = WVO + 4 * kk + 2 * h
            a(f"ds_read_b64_tr_b16 v[{r}:{r+1}], v{vAtr} offset:{WO + kk*6144 + h*768}")
    a("s_waitcnt lgkmcnt(6)")
    for kk in range(3):
        c = "0" if kk == 0 else f"v[{S}:{S+3}]"
        a(f"v_mfma_f32_16x16x32_bf16 v[{S}:{S+3}], v[{QK+4*kk}:{QK+4*kk+3}], v[{RQ+4*kk}:{RQ+4*kk+3}], {c}")
    a(f"""
    v_mul_u32_u24 v{vAw}, {XS}, v{vN}
    v_lshl_add_u32 v{vAw}, v{vG}, 3, v{vAw}
    s_lshl_b32 s{sT1}, s{sW}, 5
    v_add_u32 v{vAw}, s{sT1}, v{vAw}
    v_cvt_pk_bf16_f32 v{vT0}, v{S}, v{S+1}
    v_cvt_pk_bf16_f32 v{vT1}, v{S+2}, v{S+3}
    ds_write_b64 v{vAw}, v[{vT0}:{vT1}] offset:{QB}
    v_add_u32 v{vT2}, {XB}, v{vAq}
    """)
    for half in range(3):
        for cti in range(2):
            ct = 2 * half + cti
            for kk in range(3):
                r = S + 4 + 12 * cti + 4 * kk
                a(f"ds_read_b128 v[{r}:{r+3}], v{vT2} offset:{WV + ct*3072 + kk*64}")
        a("s_waitcnt lgkmcnt(0)")
        for cti in range(2):
            ct = 2 * half + cti
            for kk in range(3):
                r = S + 4 + 12 * cti + 4 * kk
                c = "0" if kk == 0 else f"v[{F+4*ct}:{F+4*ct+3}]"
                a(f"v_mfma_f32_16x16x32_bf16 v[{F+4*ct}:{F+4*ct+3}], v[{r}:{r+3}], v[{WVO+4*kk}:{WVO+4*kk+3}], {c}")
    a(f"v_add_f32 v{vT2}, v{F}, v{F+1}")
    for i in range(2, 24):
        a(f"v_add_f32 v{vT2}, v{vT2}, v{F+i}")
    crossg_sum(a, vT2, vT0)
    a(f"v_mul_f32 v{vT2}, 0x{f2u(1/96):08x}, v{vT2}")
    for i in range(24):
        a(f"v_sub_f32 v{F+i}, v{F+i}, v{vT2}")
    for i in range(12):
        a(f"v_cvt_pk_bf16_f32 v{WVO+i}, v{F+2*i}, v{F+2*i+1}")
    a(f"""
    L_skip_p3:
    s_waitcnt lgkmcnt(0)
    s_barrier
    s_cmp_ge_u32 s{sW}, 6
    s_cbranch_scc1 L_skip_p4
    s_mul_i32 s{sT1}, s{sW}, 3072
    s_add_u32 s{sT1}, s{sT1}, {XB+WK}
    v_add_u32 v{vT2}, s{sT1}, v{vAq}
    """)
    for kk in range(3):
        a(f"ds_read_b128 v[{F+4*kk}:{F+4*kk+3}], v{vT2} offset:{kk*64}")
        a(f"ds_read_b128 v[{F+12+4*kk}:{F+12+4*kk+3}], v{vAfrag} offset:{QB + kk*64}")
    a("s_waitcnt lgkmcnt(0)")
    for kk in range(3):
        c = "0" if kk == 0 else f"v[{S}:{S+3}]"
        a(f"v_mfma_f32_16x16x32_bf16 v[{S}:{S+3}], v[{F+4*kk}:{F+4*kk+3}], v[{F+12+4*kk}:{F+12+4*kk+3}], {c}")
    a(f"""
    v_cvt_pk_bf16_f32 v{vT0}, v{S}, v{S+1}
    v_cvt_pk_bf16_f32 v{vT1}, v{S+2}, v{S+3}
    ds_write_b64 v{vAw}, v[{vT0}:{vT1}] offset:{QKB}
    L_skip_p4:
    s_waitcnt lgkmcnt(0)
    s_barrier
    """)
    for kk in range(3):
        a(f"ds_read_b128 v[{QK+4*kk}:{QK+4*kk+3}], v{vAfrag} offset:{QKB + kk*64}")
    a(f"""
    v_mov_b32 v{vRS}, 0
    s_waitcnt lgkmcnt(0)
    """)
    for i in range(12):
        a(f"v_dot2c_f32_bf16 v{vRS}, s{sONE}, v{QK+i}")
    crossg_sum(a, vRS, vT0)
    a("s_waitcnt vmcnt(12)")
    for i in range(12):
        a(f"v_lshlrev_b32 v{F+2*i}, 16, v{R1+i}")
        a(f"v_and_b32 v{F+2*i+1}, 0xffff0000, v{R1+i}")
    for T in range(4):
        R = R0 + 12 * T
        a(f"s_waitcnt vmcnt({9 - 3*T})")
        X = R1
        for hh in range(2):
            for i in range(6):
                a(f"v_dot2_f32_bf16 v{X+2*i}, v{R+6*hh+i}, s{sLO}, v{F+12*hh+2*i}")
                a(f"v_dot2_f32_bf16 v{X+2*i+1}, v{R+6*hh+i}, s{sHI}, v{F+12*hh+2*i+1}")
            if hh == 0:
                a(f"v_mov_b32 v{vS1}, 0")
                a(f"v_mov_b32 v{vS2}, 0")
            for i in range(6):
                a(f"v_cvt_pk_bf16_f32 v{R+6*hh+i}, v{X+2*i}, v{X+2*i+1}")
        for j in range(3):
            a(f"ds_write_b128 v{vAxw}, v[{R+4*j}:{R+4*j+3}] offset:{T*16*XS + j*64}")
        for i in range(12):
            a(f"v_dot2c_f32_bf16 v{vS1}, s{sONE}, v{R+i}")
            a(f"v_dot2c_f32_bf16 v{vS2}, v{R+i}, v{R+i}")
        for kk in range(3):
            a(f"ds_read_b128 v[{R+4*kk}:{R+4*kk+3}], v{vAxr} offset:{T*16*XS + kk*64}")
        a(f"""
        v_add_f32_dpp v{vS1}, v{vS1}, v{vS1} quad_perm:[1,0,3,2] row_mask:0xf bank_mask:0xf
        v_add_f32_dpp v{vS2}, v{vS2}, v{vS2} quad_perm:[1,0,3,2] row_mask:0xf bank_mask:0xf
        v_add_f32_dpp v{vS1}, v{vS1}, v{vS1} quad_perm:[2,3,0,1] row_mask:0xf bank_mask:0xf
        v_add_f32_dpp v{vS2}, v{vS2}, v{vS2} quad_perm:[2,3,0,1] row_mask:0xf bank_mask:0xf
        v_mul_f32 v{vS1}, 0x{f2u(1/96):08x}, v{vS1}
        v_mul_f32 v{vT0}, v{vS1}, v{vS1}
        v_mov_b32 v{vT1}, 0x{f2u(1/96):08x}
        v_fma_f32 v{vS2}, v{vS2}, v{vT1}, -v{vT0}
        """)
        sd_mimic(a, vS2, vT0)
        a(f"""
        v_rcp_f32 v{vS2}, v{vS2}
        v_mul_f32 v{vS2}, 0x{f2u(CONST):08x}, v{vS2}
        v_cndmask_b32 v{vS1}, v{vS1}, v{vS2}, s[{sM1}:{sM1+1}]
        v_cndmask_b32 v{vS1}, v{vT0}, v{vS1}, s[{sM0}:{sM0+1}]
        ds_write_b32 v{vAst}, v{vS1}
        v_add_u32 v{vAst}, v{vAst}, v{vAstep}
        ds_read_b128 v[{C1+4*T}:{C1+4*T+3}], v{vAsr} offset:{SC + T*64}
        ds_read_b128 v[{X}:{X+3}], v{vAsr} offset:{SM + T*64}
        s_waitcnt lgkmcnt(3)
        """)
        for kk in range(3):
            c = "0" if kk == 0 else f"v[{S+4*T}:{S+4*T+3}]"
            a(f"v_mfma_f32_16x16x32_bf16 v[{S+4*T}:{S+4*T+3}], v[{R+4*kk}:{R+4*kk+3}], v[{QK+4*kk}:{QK+4*kk+3}], {c}")
        a("s_waitcnt lgkmcnt(0)")
        for r in range(4):
            a(f"v_fma_f32 v{S+4*T+r}, -v{X+r}, v{vRS}, v{S+4*T+r}")
        for r in range(4):
            a(f"v_mul_f32 v{S+4*T+r}, v{S+4*T+r}, v{C1+4*T+r}")
        if T == 0:
            a(f"v_max_f32 v{vMX}, v{S}, v{S+1}")
            a(f"v_max3_f32 v{vMX}, v{vMX}, v{S+2}, v{S+3}")
        else:
            a(f"v_max3_f32 v{vMX}, v{vMX}, v{S+4*T}, v{S+4*T+1}")
            a(f"v_max3_f32 v{vMX}, v{vMX}, v{S+4*T+2}, v{S+4*T+3}")
    a(f"""
    v_lshlrev_b32 v{vAw}, 2, v{vN}
    ds_max_f32 v{vAw}, v{vMX} offset:{MB}
    s_waitcnt lgkmcnt(0)
    s_barrier
    ds_read_b32 v{vMX}, v{vAw} offset:{MB}
    """)
    XT = 84
    a(f"""
    v_lshrrev_b32 v{vT0}, 2, v{vN}
    v_lshl_add_u32 v{vT0}, v{vG}, 2, v{vT0}
    v_mul_u32_u24 v{vAtr}, {XS}, v{vT0}
    v_lshl_add_u32 v{vAtr}, v{vQD}, 3, v{vAtr}
    s_min_u32 s{sT1}, s{sW}, 6
    s_lshl_b32 s{sT1}, s{sT1}, 5
    s_add_u32 s{sT1}, s{sT1}, {XB}
    v_add_u32 v{vAtr}, s{sT1}, v{vAtr}
    v_add_u32 v{vT3}, {9*32*XS}, v{vAtr}
    s_waitcnt lgkmcnt(0)
    """)
    for i in range(16):
        a(f"v_sub_f32 v{S+i}, v{S+i}, v{vMX}")
    for i in range(16):
        a(f"v_exp_f32 v{S+i}, v{S+i}")
    for i in range(16):
        a(f"v_mul_f32 v{S+i}, v{S+i}, v{C1+i}")
    for i in range(8):
        a(f"v_cvt_pk_bf16_f32 v{S+i}, v{S+2*i}, v{S+2*i+1}")
    a(f"""
    s_lshl_b32 s{sT1}, s{sW}, 11
    v_add_u32 v{vT2}, s{sT1}, v{vAlin}
    v_add_u32 v{vT2}, {PB}, v{vT2}
    ds_write_b128 v{vT2}, v[{S}:{S+3}]
    ds_write_b128 v{vT2}, v[{S+4}:{S+7}] offset:1024
    s_cmp_ge_u32 s{sW}, 7
    s_cbranch_scc1 L_skip_xt
    """)
    for s in range(18):
        base = vAtr if s < 9 else vT3
        so = (s if s < 9 else s - 9) * 32 * XS
        for h in range(2):
            r = XT + 4 * s + 2 * h
            a(f"ds_read_b64_tr_b16 v[{r}:{r+1}], v{base} offset:{so + h*16*XS}")
        if s in (5, 11):
            a("s_waitcnt lgkmcnt(2)")
    a(f"""
    L_skip_xt:
    s_waitcnt lgkmcnt(0)
    s_barrier
    s_cmp_ge_u32 s{sW}, 7
    s_cbranch_scc1 L_skip_g2
    v_add_u32 v{vT2}, {PB}, v{vAlin}
    """)
    PTL = [156, 160, 164, 28, 32, 36, 68, 72, 76]
    for b in range(2):
        for s in range(9):
            a(f"ds_read_b128 v[{PTL[s]}:{PTL[s]+3}], v{vT2} offset:{(9*b+s)*1024}")
        for s in range(9):
            ss = 9 * b + s
            a(f"s_waitcnt lgkmcnt({8-s})")
            c = "0" if ss == 0 else f"v[{S}:{S+3}]"
            a(f"v_mfma_f32_16x16x32_bf16 v[{S}:{S+3}], v[{XT+4*ss}:{XT+4*ss+3}], v[{PTL[s]}:{PTL[s]+3}], {c}")
    a(f"""
    s_cmp_eq_u32 s{sW}, 6
    s_cbranch_scc1 L_ml
    v_cvt_pk_bf16_f32 v{vT0}, v{S}, v{S+1}
    v_cvt_pk_bf16_f32 v{vT1}, v{S+2}, v{S+3}
    s_lshr_b32 s{sT0}, s{sW}, 1
    s_lshl_b32 s{sT0}, s{sT0}, 10
    s_and_b32 s{sT1}, s{sW}, 1
    s_lshl_b32 s{sT1}, s{sT1}, 3
    s_add_u32 s{sT0}, s{sT0}, s{sT1}
    s_add_u32 s{sT0}, s{sT0}, {AB}
    v_add_u32 v{vT2}, s{sT0}, v{vAlin}
    ds_write_b64 v{vT2}, v[{vT0}:{vT1}]
    s_branch L_skip_g2
    L_ml:
    s_and_b32 s{sT0}, s2, 7
    s_lshl_b32 s{sT0}, s{sT0}, 5
    s_lshr_b32 s{sT1}, s2, 3
    s_add_u32 s{sT0}, s{sT0}, s{sT1}
    s_lshl_b32 s{sT0}, s{sT0}, 3
    s_add_u32 s{sT0}, s{sT0}, {ML_OFF}
    v_lshlrev_b32 v{vT2}, 11, v{vN}
    s_nop 7
    v_mov_b32 v{vT0}, v{vMX}
    v_mov_b32 v{vT1}, v{S}
    s_mov_b64 exec, 0xffff
    buffer_store_dwordx2 v[{vT0}:{vT1}], v{vT2}, s[{sWS}:{sWS+3}], s{sT0} offen
    s_mov_b64 exec, -1
    L_skip_g2:
    s_waitcnt lgkmcnt(0)
    s_barrier
    s_cmp_ge_u32 s{sW}, 6
    s_cbranch_scc1 L_end
    v_add_u32 v{vT2}, {AB}, v{vAlin}
    """)
    for kk in range(3):
        a(f"ds_read_b128 v[{PTL[kk]}:{PTL[kk]+3}], v{vT2} offset:{kk*1024}")
    a(f"""
    s_and_b32 s{sT0}, s2, 7
    s_lshl_b32 s{sT0}, s{sT0}, 5
    s_lshr_b32 s{sT1}, s2, 3
    s_add_u32 s{sT0}, s{sT0}, s{sT1}
    s_lshl_b32 s{sT0}, s{sT0}, 6
    s_lshl_b32 s{sT1}, s{sW}, 14
    s_add_u32 s{sT0}, s{sT0}, s{sT1}
    v_mul_u32_u24 v{vT3}, {6*16384}, v{vN}
    v_lshl_add_u32 v{vT3}, v{vG}, 4, v{vT3}
    s_waitcnt lgkmcnt(0)
    """)
    for kk in range(3):
        c = "0" if kk == 0 else f"v[{S}:{S+3}]"
        a(f"v_mfma_f32_16x16x32_bf16 v[{S}:{S+3}], v[{WVO+4*kk}:{WVO+4*kk+3}], v[{PTL[kk]}:{PTL[kk]+3}], {c}")
    a(f"""
    buffer_store_dwordx4 v[{S}:{S+3}], v{vT3}, s[{sWS}:{sWS+3}], s{sT0} offen
    L_end:
    s_endpgm
    """)
    return a.finish(), NV, 96

def wave_red(a, op, v, t):
    a(f"""
    v_{op}_f32_dpp v{v}, v{v}, v{v} quad_perm:[1,0,3,2] row_mask:0xf bank_mask:0xf
    v_{op}_f32_dpp v{v}, v{v}, v{v} quad_perm:[2,3,0,1] row_mask:0xf bank_mask:0xf
    v_{op}_f32_dpp v{v}, v{v}, v{v} row_ror:4 row_mask:0xf bank_mask:0xf
    v_{op}_f32_dpp v{v}, v{v}, v{v} row_ror:8 row_mask:0xf bank_mask:0xf
    v_mov_b32 v{t}, v{v}
    v_permlane32_swap_b32 v{v}, v{t}
    v_{op}_f32 v{v}, v{v}, v{t}
    v_mov_b32 v{t}, v{v}
    v_permlane16_swap_b32 v{v}, v{t}
    v_{op}_f32 v{v}, v{v}, v{t}
    """)

def gen_red():
    a = Asm()
    sWS, sQ, sO = 36, 40, 44
    a(f"""
    s_cmp_ge_u32 s2, 96
    s_cbranch_scc1 L_rend
    s_load_dwordx2 s[16:17], s[0:1], 0
    s_load_dwordx2 s[30:31], s[0:1], 56
    s_load_dwordx2 s[34:35], s[0:1], 72
    s_mul_hi_u32 s4, s2, 0x2aaaaaab
    s_mul_i32 s5, s4, 6
    s_sub_u32 s5, s2, s5
    s_lshl_b32 s6, s2, 14
    s_lshl_b32 s7, s4, 11
    s_add_u32 s7, s7, {ML_OFF}
    v_lshlrev_b32 v1, 4, v0
    v_and_b32 v2, 63, v0
    v_lshlrev_b32 v2, 5, v2
    v_lshrrev_b32 v3, 2, v0
    v_lshlrev_b32 v3, 3, v3
    s_mul_i32 s8, s4, 192
    s_lshl_b32 s9, s5, 5
    s_add_u32 s8, s8, s9
    v_lshlrev_b32 v4, 1, v0
    s_waitcnt lgkmcnt(0)
    """)
    srd(a, sWS, 34, 0x10000000); srd(a, sQ, 16, 3072); srd(a, sO, 30, 3072)
    a(f"""
    buffer_load_dwordx4 v[8:11], v2, s[{sWS}:{sWS+3}], s7 offen
    buffer_load_dwordx4 v[12:15], v2, s[{sWS}:{sWS+3}], s7 offen offset:16
    """)
    for j in range(4):
        a(f"buffer_load_dword v{16+j}, v3, s[{sWS}:{sWS+3}], s7 offen offset:{512*j}")
    a("s_add_u32 s10, s6, 8192")
    for j in range(4):
        so = 6 if j < 2 else 10
        if j & 1:
            a(f"v_add_u32 v5, 4096, v1")
            a(f"buffer_load_dwordx4 v[{20+4*j}:{23+4*j}], v5, s[{sWS}:{sWS+3}], s{so} offen")
        else:
            a(f"buffer_load_dwordx4 v[{20+4*j}:{23+4*j}], v1, s[{sWS}:{sWS+3}], s{so} offen")
    a(f"""
    buffer_load_ushort v6, v4, s[{sQ}:{sQ+3}], s8 offen
    s_waitcnt vmcnt(9)
    v_max_f32 v36, v8, v10
    v_max3_f32 v36, v36, v12, v14
    """)
    wave_red(a, "max", 36, 37)
    for j in range(4):
        a(f"v_sub_f32 v{8+2*j}, v{8+2*j}, v36")
    for j in range(4):
        a(f"v_exp_f32 v{8+2*j}, v{8+2*j}")
    a(f"""
    v_mul_f32 v38, v8, v9
    v_fmac_f32 v38, v10, v11
    v_fmac_f32 v38, v12, v13
    v_fmac_f32 v38, v14, v15
    """)
    wave_red(a, "add", 38, 37)
    a("s_waitcnt vmcnt(5)")
    for j in range(4):
        a(f"v_sub_f32 v{16+j}, v{16+j}, v36")
    for j in range(4):
        a(f"v_exp_f32 v{16+j}, v{16+j}")
    a("v_rcp_f32 v38, v38")
    a("s_waitcnt vmcnt(1)")
    for r in range(4):
        a(f"v_mul_f32 v{40+r}, v16, v{20+r}")
    for j in range(1, 4):
        for r in range(4):
            a(f"v_fmac_f32 v{40+r}, v{16+j}, v{20+4*j+r}")
    for r in range(4):
        a(f"v_add_f32_dpp v{40+r}, v{40+r}, v{40+r} row_ror:4 row_mask:0xf bank_mask:0xf")
    for r in range(4):
        a(f"v_add_f32_dpp v{40+r}, v{40+r}, v{40+r} row_ror:8 row_mask:0xf bank_mask:0xf")
    a(f"""
    v_lshrrev_b32 v5, 4, v0
    v_lshlrev_b32 v5, 6, v5
    v_and_b32 v7, 3, v0
    v_lshl_add_u32 v5, v7, 4, v5
    ds_write_b128 v5, v[40:43]
    s_waitcnt lgkmcnt(0)
    s_barrier
    v_cmp_gt_u32 vcc, 64, v0
    s_and_saveexec_b64 s[12:13], vcc
    s_cbranch_execz L_rend
    v_lshlrev_b32 v5, 2, v0
    ds_read_b32 v40, v5
    ds_read_b32 v41, v5 offset:256
    ds_read_b32 v42, v5 offset:512
    ds_read_b32 v43, v5 offset:768
    s_waitcnt lgkmcnt(0)
    v_add_f32 v40, v40, v41
    v_add_f32 v42, v42, v43
    v_add_f32 v40, v40, v42
    v_mov_b32 v37, v40
    v_permlane32_swap_b32 v40, v37
    v_add_f32 v40, v40, v37
    v_mov_b32 v37, v40
    v_permlane16_swap_b32 v40, v37
    v_add_f32 v40, v40, v37
    s_waitcnt vmcnt(0)
    v_lshlrev_b32 v6, 16, v6
    v_fma_f32 v40, v40, v38, v6
    v_cvt_pk_bf16_f32 v40, v40, v40
    s_mov_b64 exec, 0xffff
    buffer_store_short v40, v4, s[{sO}:{sO+3}], s8 offen
    L_rend:
    s_endpgm
    """)
    return a.finish(), 48, 48

def kd(name, nv, ns):
    acc = (nv + 3) // 4 * 4
    return f""".p2align 6
.amdhsa_kernel {name}
  .amdhsa_next_free_vgpr {nv}
  .amdhsa_next_free_sgpr {ns}
  .amdhsa_accum_offset {acc}
  .amdhsa_group_segment_fixed_size 0
  .amdhsa_kernarg_size 80
  .amdhsa_user_sgpr_count 2
  .amdhsa_user_sgpr_kernarg_segment_ptr 1
  .amdhsa_system_sgpr_workgroup_id_x 1
  .amdhsa_float_denorm_mode_32 3
.end_amdhsa_kernel
"""

def build():
    m, mv, ms = gen_main()
    r, rv, rs = gen_red()
    k1 = NAME + "_kernel"
    k2 = "reduce_kernel"
    out = HDR
    out += f"; @launch kernel={k1} grid=(256,1,1) block=(576,1,1) lds={LDS_TOTAL}\n"
    out += f"; @launch kernel={k2} grid=(96,1,1) block=(256,1,1) lds=1024\n"
    out += '.amdgcn_target "amdgcn-amd-amdhsa--gfx950"\n.text\n'
    for k, body in ((k1, m), (k2, r)):
        out += f".globl {k}\n.p2align 8\n.type {k},@function\n{k}:\n{body}"
    out += '.section .rodata,"a"\n'
    out += kd(k1, mv, ms) + kd(k2, rv, rs)
    return out

if __name__ == "__main__":
    path = sys.argv[1] if len(sys.argv) > 1 else "cdna_kernels/%s.s" % NAME
    open(path, "w").write(build())
    print("LDS", LDS_TOTAL)
```

```python
import sys
from asmgen import Asm

NAME = "standalone__detection_seg_dino__vision"
HDR = open("cdna_kernels/%s.s.ref" % NAME).read().split("; Override launch")[0]

XS = 208
NROW = 576
PB = 0
SC = PB + 18432
SM = SC + 2304
QB = SM + 2304
QKB = QB + 16 * XS
AB = QKB + 16 * XS
MB = AB + 3072
XB = MB + 64
WQ, WO, WV, WK = 0, 18432, 36864, 55296
LDS_TOTAL = XB + NROW * XS + 16
CONST = 96 ** -0.5 * 1.4426950408889634
import struct
def f2u(f): return struct.unpack('<I', struct.pack('<f', f))[0]

ML_OFF = 96 * 256 * 64

def srd(a, d, base, nbytes):
    a(f"""
    s_mov_b32 s{d}, s{base}
    s_and_b32 s{d+1}, s{base+1}, 0xffff
    s_mov_b32 s{d+2}, {nbytes}
    s_mov_b32 s{d+3}, 0x00020000
    """)

def crossg_sum(a, v, t):
    a(f"""
    v_mov_b32 v{t}, v{v}
    v_permlane32_swap_b32 v{v}, v{t}
    v_add_f32 v{v}, v{v}, v{t}
    v_mov_b32 v{t}, v{v}
    v_permlane16_swap_b32 v{v}, v{t}
    v_add_f32 v{v}, v{v}, v{t}
    """)

def sd_mimic(a, var, t):
    a(f"""
    v_max_f32 v{var}, 0, v{var}
    v_cvt_pk_bf16_f32 v{var}, v{var}, v{var}
    v_and_b32 v{var}, 0xffff0000, v{var}
    v_add_f32 v{var}, 0x{f2u(1e-5):08x}, v{var}
    v_cvt_pk_bf16_f32 v{var}, v{var}, v{var}
    v_and_b32 v{var}, 0xffff0000, v{var}
    v_sqrt_f32 v{var}, v{var}
    v_cvt_pk_bf16_f32 v{t}, v{var}, v{var}
    v_and_b32 v{var}, 0xffff0000, v{t}
    """)

def gen_main(stamps=False):
    a = Asm()
    def stamp(i):
        if stamps:
            a(f"s_memrealtime s[{82+2*i}:{83+2*i}]")
            if i: a("s_waitcnt lgkmcnt(0)")
    sW = 3
    sF0, sF1, sQ, sWQ, sWK, sWV, sWO, sWS = 36, 40, 44, 48, 52, 56, 60, 64
    sLO, sHI, sONE = 68, 69, 70
    sOF0a, sOF0b, sOF1, sT0, sT1, sU = 71, 72, 73, 74, 75, 76
    sM0, sM1 = 78, 80
    vL, vN, vG, vTQ, vQD = 1, 2, 3, 4, 5
    vAf0, vAf1, vAlin, vAq = 6, 7, 8, 9
    vAfrag = 10
    vAtr = 11
    vAxw = 12
    vAxr = 13
    vAst = 14
    vAstep = 15
    vAsr = 16
    vRS = 17
    vT0, vT1, vT2, vT3 = 18, 19, 20, 21
    vS1, vS2, vS1b, vS2b = 22, 23, 24, 25
    vMX = 26
    vAw = 27
    QK = 28
    WVO = 40
    S = 52
    C1 = 68
    F = 84
    R1 = 108
    R0 = 120
    RQ = C1
    NV = 168
    stamp(0)
    a(f"""
    s_cmp_ge_u32 s2, 256
    s_cbranch_scc1 L_end
    s_load_dwordx16 s[16:31], s[0:1], 0
    s_load_dwordx4 s[32:35], s[0:1], 64
    v_and_b32 v{vL}, 63, v0
    v_lshrrev_b32 v{vT0}, 6, v0
    v_and_b32 v{vN}, 15, v{vL}
    v_readfirstlane_b32 s{sW}, v{vT0}
    v_lshrrev_b32 v{vG}, 4, v{vL}
    v_lshrrev_b32 v{vTQ}, 2, v{vL}
    v_and_b32 v{vQD}, 3, v{vL}
    v_lshlrev_b32 v{vT0}, 4, v{vQD}
    v_mul_u32_u24 v{vAf1}, 192, v{vTQ}
    v_lshl_add_u32 v{vAf0}, v{vAf1}, 1, v{vT0}
    v_add_u32 v{vAf1}, v{vAf1}, v{vT0}
    v_lshlrev_b32 v{vAlin}, 4, v{vL}
    v_mul_u32_u24 v{vAq}, 192, v{vN}
    v_lshl_add_u32 v{vAq}, v{vG}, 4, v{vAq}
    s_mul_i32 s{sU}, s2, 9
    s_add_u32 s{sU}, s{sU}, s{sW}
    s_mul_i32 s{sOF1}, s{sU}, 3072
    s_mul_hi_u32 s{sT0}, s{sU}, 0x15555556
    s_mul_i32 s{sT1}, s{sT0}, 12
    s_sub_u32 s{sT1}, s{sU}, s{sT1}
    s_mul_i32 s{sOF0a}, s{sT0}, 147456
    s_mul_i32 s{sT1}, s{sT1}, 6144
    s_add_u32 s{sOF0a}, s{sOF0a}, s{sT1}
    s_add_u32 s{sOF0b}, s{sOF0a}, 73728
    s_lshl_b32 s{sT0}, s{sW}, 11
    s_mov_b32 s{sLO}, 0x00003f80
    s_mov_b32 s{sHI}, 0x3f800000
    s_mov_b32 s{sONE}, 0x3f803f80
    s_waitcnt lgkmcnt(0)
    """)
    stamp(1)
    srd(a, sQ, 16, 3072)
    srd(a, sWQ, 22, 18432); srd(a, sWK, 24, 18432); srd(a, sWV, 26, 18432); srd(a, sWO, 28, 18432)
    srd(a, sF1, 20, 7077888); srd(a, sF0, 18, 28311552)
    for kk in range(3):
        a(f"buffer_load_dwordx4 v[{RQ+4*kk}:{RQ+4*kk+3}], v{vAq}, s[{sQ}:{sQ+3}], 0 offen offset:{64*kk}")
    for (sr, base) in ((sWQ, WQ), (sWK, WK), (sWV, WV), (sWO, WO)):
        a(f"""
        s_add_u32 m0, s{sT0}, {XB+base}
        buffer_load_dwordx4 v{vAlin}, s[{sr}:{sr+3}], s{sT0} offen lds
        buffer_load_dwordx4 v{vAlin}, s[{sr}:{sr+3}], s{sT0} offen offset:1024 lds
        """)
    for j in range(3):
        a(f"buffer_load_dwordx4 v[{R1+4*j}:{R1+4*j+3}], v{vAf1}, s[{sF1}:{sF1+3}], s{sOF1} offen offset:{64*j}")
    for T in range(4):
        so = sOF0a if T < 2 else sOF0b
        for j in range(3):
            r = R0 + 12 * T + 4 * j
            a(f"buffer_load_dwordx4 v[{r}:{r+3}], v{vAf0}, s[{sF0}:{sF0+3}], s{so} offen offset:{(T&1)*192+64*j}")
    stamp(2)
    srd(a, sWS, 34, 0x10000000)
    a(f"""
    v_mul_u32_u24 v{vAfrag}, {XS}, v{vN}
    v_lshl_add_u32 v{vAfrag}, v{vG}, 4, v{vAfrag}
    v_lshrrev_b32 v{vT0}, 2, v{vN}
    v_lshl_add_u32 v{vT0}, v{vG}, 3, v{vT0}
    v_mul_u32_u24 v{vAtr}, 192, v{vT0}
    v_lshl_add_u32 v{vAtr}, v{vQD}, 3, v{vAtr}
    s_lshl_b32 s{sT1}, s{sW}, 5
    s_add_u32 s{sT1}, s{sT1}, {XB}
    v_add_u32 v{vAtr}, s{sT1}, v{vAtr}
    s_mul_i32 s{sT1}, s{sW}, {64*XS}
    s_add_u32 s{sT1}, s{sT1}, {XB}
    v_mul_u32_u24 v{vAxw}, {XS}, v{vTQ}
    v_add_u32 v{vAxw}, s{sT1}, v{vAxw}
    v_add_u32 v{vT1}, 192, v{vAxw}
    v_lshl_add_u32 v{vAxw}, v{vQD}, 4, v{vAxw}
    v_add_u32 v{vAxr}, s{sT1}, v{vAfrag}
    s_lshl_b32 s{sT1}, s{sW}, 8
    v_lshlrev_b32 v{vT0}, 2, v{vTQ}
    v_add_u32 v{vT0}, s{sT1}, v{vT0}
    v_mul_u32_u24 v{vT2}, {SM-SC}, v{vQD}
    v_add3_u32 v{vT0}, v{vT0}, v{vT2}, 0
    v_add_u32 v{vT0}, {SC}, v{vT0}
    v_cmp_gt_u32 s[{sM0}:{sM0+1}], 2, v{vQD}
    v_cmp_eq_u32 s[{sM1}:{sM1+1}], 0, v{vQD}
    v_cndmask_b32 v{vAst}, v{vT1}, v{vT0}, s[{sM0}:{sM0+1}]
    v_mov_b32 v{vT1}, {16*XS}
    v_mov_b32 v{vT0}, 64
    v_cndmask_b32 v{vAstep}, v{vT1}, v{vT0}, s[{sM0}:{sM0+1}]
    v_lshlrev_b32 v{vAsr}, 4, v{vG}
    v_add_u32 v{vAsr}, s{sT1}, v{vAsr}
    v_lshlrev_b32 v{vAw}, 2, v{vN}
    v_mov_b32 v{vT0}, 0xff800000
    ds_write_b32 v{vAw}, v{vT0} offset:{MB}
    """)
    a(f"""
    s_waitcnt vmcnt(23)
    v_mov_b32 v{vS1}, 0
    v_mov_b32 v{vS2}, 0
    """)
    stamp(3)
    for i in range(12):
        a(f"v_dot2c_f32_bf16 v{vS1}, s{sONE}, v{RQ+i}")
        a(f"v_dot2c_f32_bf16 v{vS2}, v{RQ+i}, v{RQ+i}")
    crossg_sum(a, vS1, vT0)
    crossg_sum(a, vS2, vT0)
    a(f"""
    v_mul_f32 v{vS1}, 0x{f2u(1/96):08x}, v{vS1}
    v_mul_f32 v{vT0}, v{vS1}, v{vS1}
    v_mov_b32 v{vT1}, 0x{f2u(1/96):08x}
    v_fma_f32 v{vS2}, v{vS2}, v{vT1}, -v{vT0}
    """)
    sd_mimic(a, vS2, vT0)
    a(f"""
    v_rcp_f32 v{vS2}, v{vS2}
    v_sub_f32 v{vS1}, 0, v{vS1}
    """)
    for i in range(12):
        a(f"v_dot2_f32_bf16 v{F+2*i}, v{RQ+i}, s{sLO}, v{vS1}")
        a(f"v_dot2_f32_bf16 v{F+2*i+1}, v{RQ+i}, s{sHI}, v{vS1}")
    for i in range(12):
        a(f"v_mul_f32 v{F+2*i}, v{F+2*i}, v{vS2}")
        a(f"v_mul_f32 v{F+2*i+1}, v{F+2*i+1}, v{vS2}")
        a(f"v_cvt_pk_bf16_f32 v{RQ+i}, v{F+2*i}, v{F+2*i+1}")
    a(f"""
    s_waitcnt vmcnt(15) lgkmcnt(0)
    s_barrier
    """)
    stamp(4)
    a(f"""
    s_cmp_ge_u32 s{sW}, 6
    s_cbranch_scc1 L_skip_p3
    """)
    for kk in range(3):
        for h in range(2):
            r = QK + 4 * kk + 2 * h
            a(f"ds_read_b64_tr_b16 v[{r}:{r+1}], v{vAtr} offset:{WQ + kk*6144 + h*768}")
    for kk in range(3):
        for h in range(2):
            r = WVO + 4 * kk + 2 * h
            a(f"ds_read_b64_tr_b16 v[{r}:{r+1}], v{vAtr} offset:{WO + kk*6144 + h*768}")
    a("s_waitcnt lgkmcnt(6)")
    for kk in range(3):
        c = "0" if kk == 0 else f"v[{S}:{S+3}]"
        a(f"v_mfma_f32_16x16x32_bf16 v[{S}:{S+3}], v[{QK+4*kk}:{QK+4*kk+3}], v[{RQ+4*kk}:{RQ+4*kk+3}], {c}")
    a(f"""
    v_mul_u32_u24 v{vAw}, {XS}, v{vN}
    v_lshl_add_u32 v{vAw}, v{vG}, 3, v{vAw}
    s_lshl_b32 s{sT1}, s{sW}, 5
    v_add_u32 v{vAw}, s{sT1}, v{vAw}
    v_cvt_pk_bf16_f32 v{vT0}, v{S}, v{S+1}
    v_cvt_pk_bf16_f32 v{vT1}, v{S+2}, v{S+3}
    ds_write_b64 v{vAw}, v[{vT0}:{vT1}] offset:{QB}
    v_add_u32 v{vT2}, {XB}, v{vAq}
    """)
    for half in range(3):
        for cti in range(2):
            ct = 2 * half + cti
            for kk in range(3):
                r = S + 4 + 12 * cti + 4 * kk
                a(f"ds_read_b128 v[{r}:{r+3}], v{vT2} offset:{WV + ct*3072 + kk*64}")
        a("s_waitcnt lgkmcnt(0)")
        for cti in range(2):
            ct = 2 * half + cti
            for kk in range(3):
                r = S + 4 + 12 * cti + 4 * kk
                c = "0" if kk == 0 else f"v[{F+4*ct}:{F+4*ct+3}]"
                a(f"v_mfma_f32_16x16x32_bf16 v[{F+4*ct}:{F+4*ct+3}], v[{r}:{r+3}], v[{WVO+4*kk}:{WVO+4*kk+3}], {c}")
    a(f"v_add_f32 v{vT2}, v{F}, v{F+1}")
    for i in range(2, 24):
        a(f"v_add_f32 v{vT2}, v{vT2}, v{F+i}")
    crossg_sum(a, vT2, vT0)
    a(f"v_mul_f32 v{vT2}, 0x{f2u(1/96):08x}, v{vT2}")
    for i in range(24):
        a(f"v_sub_f32 v{F+i}, v{F+i}, v{vT2}")
    for i in range(12):
        a(f"v_cvt_pk_bf16_f32 v{WVO+i}, v{F+2*i}, v{F+2*i+1}")
    a(f"""
    L_skip_p3:
    s_waitcnt lgkmcnt(0)
    s_barrier
    s_cmp_ge_u32 s{sW}, 6
    s_cbranch_scc1 L_skip_p4
    s_mul_i32 s{sT1}, s{sW}, 3072
    s_add_u32 s{sT1}, s{sT1}, {XB+WK}
    v_add_u32 v{vT2}, s{sT1}, v{vAq}
    """)
    for kk in range(3):
        a(f"ds_read_b128 v[{F+4*kk}:{F+4*kk+3}], v{vT2} offset:{kk*64}")
        a(f"ds_read_b128 v[{F+12+4*kk}:{F+12+4*kk+3}], v{vAfrag} offset:{QB + kk*64}")
    a("s_waitcnt lgkmcnt(0)")
    for kk in range(3):
        c = "0" if kk == 0 else f"v[{S}:{S+3}]"
        a(f"v_mfma_f32_16x16x32_bf16 v[{S}:{S+3}], v[{F+4*kk}:{F+4*kk+3}], v[{F+12+4*kk}:{F+12+4*kk+3}], {c}")
    a(f"""
    v_cvt_pk_bf16_f32 v{vT0}, v{S}, v{S+1}
    v_cvt_pk_bf16_f32 v{vT1}, v{S+2}, v{S+3}
    ds_write_b64 v{vAw}, v[{vT0}:{vT1}] offset:{QKB}
    L_skip_p4:
    s_waitcnt lgkmcnt(0)
    s_barrier
    """)
    stamp(5)
    for kk in range(3):
        a(f"ds_read_b128 v[{QK+4*kk}:{QK+4*kk+3}], v{vAfrag} offset:{QKB + kk*64}")
    a(f"""
    v_mov_b32 v{vRS}, 0
    s_waitcnt lgkmcnt(0)
    """)
    for i in range(12):
        a(f"v_dot2c_f32_bf16 v{vRS}, s{sONE}, v{QK+i}")
    crossg_sum(a, vRS, vT0)
    a("s_waitcnt vmcnt(12)")
    for i in range(12):
        a(f"v_lshlrev_b32 v{F+2*i}, 16, v{R1+i}")
        a(f"v_and_b32 v{F+2*i+1}, 0xffff0000, v{R1+i}")
    for T in range(4):
        R = R0 + 12 * T
        a(f"s_waitcnt vmcnt({9 - 3*T})")
        if T == 0: stamp(6)
        if T == 3: stamp(7)
        X = R1
        for hh in range(2):
            for i in range(6):
                a(f"v_dot2_f32_bf16 v{X+2*i}, v{R+6*hh+i}, s{sLO}, v{F+12*hh+2*i}")
                a(f"v_dot2_f32_bf16 v{X+2*i+1}, v{R+6*hh+i}, s{sHI}, v{F+12*hh+2*i+1}")
            if hh == 0:
                a(f"v_mov_b32 v{vS1}, 0")
                a(f"v_mov_b32 v{vS2}, 0")
            for i in range(6):
                a(f"v_cvt_pk_bf16_f32 v{R+6*hh+i}, v{X+2*i}, v{X+2*i+1}")
        for j in range(3):
            a(f"ds_write_b128 v{vAxw}, v[{R+4*j}:{R+4*j+3}] offset:{T*16*XS + j*64}")
        for i in range(12):
            a(f"v_dot2c_f32_bf16 v{vS1}, s{sONE}, v{R+i}")
            a(f"v_dot2c_f32_bf16 v{vS2}, v{R+i}, v{R+i}")
        for kk in range(3):
            a(f"ds_read_b128 v[{R+4*kk}:{R+4*kk+3}], v{vAxr} offset:{T*16*XS + kk*64}")
        a(f"""
        v_add_f32_dpp v{vS1}, v{vS1}, v{vS1} quad_perm:[1,0,3,2] row_mask:0xf bank_mask:0xf
        v_add_f32_dpp v{vS2}, v{vS2}, v{vS2} quad_perm:[1,0,3,2] row_mask:0xf bank_mask:0xf
        v_add_f32_dpp v{vS1}, v{vS1}, v{vS1} quad_perm:[2,3,0,1] row_mask:0xf bank_mask:0xf
        v_add_f32_dpp v{vS2}, v{vS2}, v{vS2} quad_perm:[2,3,0,1] row_mask:0xf bank_mask:0xf
        v_mul_f32 v{vS1}, 0x{f2u(1/96):08x}, v{vS1}
        v_mul_f32 v{vT0}, v{vS1}, v{vS1}
        v_mov_b32 v{vT1}, 0x{f2u(1/96):08x}
        v_fma_f32 v{vS2}, v{vS2}, v{vT1}, -v{vT0}
        """)
        sd_mimic(a, vS2, vT0)
        a(f"""
        v_rcp_f32 v{vS2}, v{vS2}
        v_mul_f32 v{vS2}, 0x{f2u(CONST):08x}, v{vS2}
        v_cndmask_b32 v{vS1}, v{vS1}, v{vS2}, s[{sM1}:{sM1+1}]
        v_cndmask_b32 v{vS1}, v{vT0}, v{vS1}, s[{sM0}:{sM0+1}]
        ds_write_b32 v{vAst}, v{vS1}
        v_add_u32 v{vAst}, v{vAst}, v{vAstep}
        ds_read_b128 v[{C1+4*T}:{C1+4*T+3}], v{vAsr} offset:{SC + T*64}
        ds_read_b128 v[{X}:{X+3}], v{vAsr} offset:{SM + T*64}
        s_waitcnt lgkmcnt(3)
        """)
        for kk in range(3):
            c = "0" if kk == 0 else f"v[{S+4*T}:{S+4*T+3}]"
            a(f"v_mfma_f32_16x16x32_bf16 v[{S+4*T}:{S+4*T+3}], v[{R+4*kk}:{R+4*kk+3}], v[{QK+4*kk}:{QK+4*kk+3}], {c}")
        a("s_waitcnt lgkmcnt(0)")
        for r in range(4):
            a(f"v_fma_f32 v{S+4*T+r}, -v{X+r}, v{vRS}, v{S+4*T+r}")
        for r in range(4):
            a(f"v_mul_f32 v{S+4*T+r}, v{S+4*T+r}, v{C1+4*T+r}")
        if T == 0:
            a(f"v_max_f32 v{vMX}, v{S}, v{S+1}")
            a(f"v_max3_f32 v{vMX}, v{vMX}, v{S+2}, v{S+3}")
        else:
            a(f"v_max3_f32 v{vMX}, v{vMX}, v{S+4*T}, v{S+4*T+1}")
            a(f"v_max3_f32 v{vMX}, v{vMX}, v{S+4*T+2}, v{S+4*T+3}")
    a(f"""
    v_lshlrev_b32 v{vAw}, 2, v{vN}
    ds_max_f32 v{vAw}, v{vMX} offset:{MB}
    s_waitcnt lgkmcnt(0)
    s_barrier
    """)
    stamp(8)
    a(f"""
    ds_read_b32 v{vMX}, v{vAw} offset:{MB}
    """)
    XT = 84
    a(f"""
    v_lshrrev_b32 v{vT0}, 2, v{vN}
    v_lshl_add_u32 v{vT0}, v{vG}, 2, v{vT0}
    v_mul_u32_u24 v{vAtr}, {XS}, v{vT0}
    v_lshl_add_u32 v{vAtr}, v{vQD}, 3, v{vAtr}
    s_min_u32 s{sT1}, s{sW}, 6
    s_lshl_b32 s{sT1}, s{sT1}, 5
    s_add_u32 s{sT1}, s{sT1}, {XB}
    v_add_u32 v{vAtr}, s{sT1}, v{vAtr}
    v_add_u32 v{vT3}, {9*32*XS}, v{vAtr}
    s_waitcnt lgkmcnt(0)
    """)
    for i in range(16):
        a(f"v_sub_f32 v{S+i}, v{S+i}, v{vMX}")
    for i in range(16):
        a(f"v_exp_f32 v{S+i}, v{S+i}")
    for i in range(16):
        a(f"v_mul_f32 v{S+i}, v{S+i}, v{C1+i}")
    for i in range(8):
        a(f"v_cvt_pk_bf16_f32 v{S+i}, v{S+2*i}, v{S+2*i+1}")
    a(f"""
    s_lshl_b32 s{sT1}, s{sW}, 11
    v_add_u32 v{vT2}, s{sT1}, v{vAlin}
    v_add_u32 v{vT2}, {PB}, v{vT2}
    ds_write_b128 v{vT2}, v[{S}:{S+3}]
    ds_write_b128 v{vT2}, v[{S+4}:{S+7}] offset:1024
    s_cmp_ge_u32 s{sW}, 7
    s_cbranch_scc1 L_skip_xt
    """)
    for s in range(18):
        base = vAtr if s < 9 else vT3
        so = (s if s < 9 else s - 9) * 32 * XS
        for h in range(2):
            r = XT + 4 * s + 2 * h
            a(f"ds_read_b64_tr_b16 v[{r}:{r+1}], v{base} offset:{so + h*16*XS}")
        if s in (5, 11):
            a("s_waitcnt lgkmcnt(2)")
    a(f"""
    L_skip_xt:
    s_waitcnt lgkmcnt(0)
    s_barrier
    s_cmp_ge_u32 s{sW}, 7
    s_cbranch_scc1 L_skip_g2
    v_add_u32 v{vT2}, {PB}, v{vAlin}
    """)
    PTL = [156, 160, 164, 28, 32, 36, 68, 72, 76]
    for b in range(2):
        for s in range(9):
            a(f"ds_read_b128 v[{PTL[s]}:{PTL[s]+3}], v{vT2} offset:{(9*b+s)*1024}")
        for s in range(9):
            ss = 9 * b + s
            a(f"s_waitcnt lgkmcnt({8-s})")
            c = "0" if ss == 0 else f"v[{S}:{S+3}]"
            a(f"v_mfma_f32_16x16x32_bf16 v[{S}:{S+3}], v[{XT+4*ss}:{XT+4*ss+3}], v[{PTL[s]}:{PTL[s]+3}], {c}")
    a(f"""
    s_cmp_eq_u32 s{sW}, 6
    s_cbranch_scc1 L_ml
    v_cvt_pk_bf16_f32 v{vT0}, v{S}, v{S+1}
    v_cvt_pk_bf16_f32 v{vT1}, v{S+2}, v{S+3}
    s_lshr_b32 s{sT0}, s{sW}, 1
    s_lshl_b32 s{sT0}, s{sT0}, 10
    s_and_b32 s{sT1}, s{sW}, 1
    s_lshl_b32 s{sT1}, s{sT1}, 3
    s_add_u32 s{sT0}, s{sT0}, s{sT1}
    s_add_u32 s{sT0}, s{sT0}, {AB}
    v_add_u32 v{vT2}, s{sT0}, v{vAlin}
    ds_write_b64 v{vT2}, v[{vT0}:{vT1}]
    s_branch L_skip_g2
    L_ml:
    s_and_b32 s{sT0}, s2, 7
    s_lshl_b32 s{sT0}, s{sT0}, 5
    s_lshr_b32 s{sT1}, s2, 3
    s_add_u32 s{sT0}, s{sT0}, s{sT1}
    s_lshl_b32 s{sT0}, s{sT0}, 3
    s_add_u32 s{sT0}, s{sT0}, {ML_OFF}
    v_lshlrev_b32 v{vT2}, 11, v{vN}
    s_nop 7
    v_mov_b32 v{vT0}, v{vMX}
    v_mov_b32 v{vT1}, v{S}
    s_mov_b64 exec, 0xffff
    buffer_store_dwordx2 v[{vT0}:{vT1}], v{vT2}, s[{sWS}:{sWS+3}], s{sT0} offen
    s_mov_b64 exec, -1
    L_skip_g2:
    s_waitcnt lgkmcnt(0)
    s_barrier
    s_cmp_ge_u32 s{sW}, 6
    s_cbranch_scc1 L_fin
    v_add_u32 v{vT2}, {AB}, v{vAlin}
    """)
    for kk in range(3):
        a(f"ds_read_b128 v[{PTL[kk]}:{PTL[kk]+3}], v{vT2} offset:{kk*1024}")
    a(f"""
    s_and_b32 s{sT0}, s2, 7
    s_lshl_b32 s{sT0}, s{sT0}, 5
    s_lshr_b32 s{sT1}, s2, 3
    s_add_u32 s{sT0}, s{sT0}, s{sT1}
    s_lshl_b32 s{sT0}, s{sT0}, 6
    s_lshl_b32 s{sT1}, s{sW}, 14
    s_add_u32 s{sT0}, s{sT0}, s{sT1}
    v_mul_u32_u24 v{vT3}, {6*16384}, v{vN}
    v_lshl_add_u32 v{vT3}, v{vG}, 4, v{vT3}
    s_waitcnt lgkmcnt(0)
    """)
    for kk in range(3):
        c = "0" if kk == 0 else f"v[{S}:{S+3}]"
        a(f"v_mfma_f32_16x16x32_bf16 v[{S}:{S+3}], v[{WVO+4*kk}:{WVO+4*kk+3}], v[{PTL[kk]}:{PTL[kk]+3}], {c}")
    a(f"""
    buffer_store_dwordx4 v[{S}:{S+3}], v{vT3}, s[{sWS}:{sWS+3}], s{sT0} offen
    L_fin:
    """)
    if stamps:
        a("s_waitcnt vmcnt(0)")
        stamp(9)
        a(f"""
        s_mul_i32 s{sT0}, s{sU}, 80
        s_add_u32 s{sT0}, s{sT0}, 0x8000000
        v_mov_b32 v1, 0
        s_mov_b64 exec, 1
        """)
        for i in range(10):
            a(f"""
            v_mov_b32 v2, s{82+2*i}
            v_mov_b32 v3, s{83+2*i}
            buffer_store_dwordx2 v[2:3], v1, s[{sWS}:{sWS+3}], s{sT0} offen offset:{8*i}
            """)
    a("""
    L_end:
    s_endpgm
    """)
    return a.finish(), NV, 102

def wave_red(a, op, v, t):
    a(f"""
    v_{op}_f32_dpp v{v}, v{v}, v{v} quad_perm:[1,0,3,2] row_mask:0xf bank_mask:0xf
    v_{op}_f32_dpp v{v}, v{v}, v{v} quad_perm:[2,3,0,1] row_mask:0xf bank_mask:0xf
    v_{op}_f32_dpp v{v}, v{v}, v{v} row_ror:4 row_mask:0xf bank_mask:0xf
    v_{op}_f32_dpp v{v}, v{v}, v{v} row_ror:8 row_mask:0xf bank_mask:0xf
    v_mov_b32 v{t}, v{v}
    v_permlane32_swap_b32 v{v}, v{t}
    v_{op}_f32 v{v}, v{v}, v{t}
    v_mov_b32 v{t}, v{v}
    v_permlane16_swap_b32 v{v}, v{t}
    v_{op}_f32 v{v}, v{v}, v{t}
    """)

def gen_red(stamps=False):
    a = Asm()
    sWS, sQ, sO = 36, 40, 44
    if stamps: a("s_memrealtime s[50:51]")
    a(f"""
    s_cmp_ge_u32 s2, 96
    s_cbranch_scc1 L_rend
    s_load_dwordx2 s[16:17], s[0:1], 0
    s_load_dwordx2 s[30:31], s[0:1], 56
    s_load_dwordx2 s[34:35], s[0:1], 72
    s_mul_hi_u32 s4, s2, 0x2aaaaaab
    s_mul_i32 s5, s4, 6
    s_sub_u32 s5, s2, s5
    s_lshl_b32 s6, s2, 14
    s_lshl_b32 s7, s4, 11
    s_add_u32 s7, s7, {ML_OFF}
    v_lshlrev_b32 v1, 4, v0
    v_and_b32 v2, 63, v0
    v_lshlrev_b32 v2, 5, v2
    v_lshrrev_b32 v3, 2, v0
    v_lshlrev_b32 v3, 3, v3
    s_mul_i32 s8, s4, 192
    s_lshl_b32 s9, s5, 5
    s_add_u32 s8, s8, s9
    v_lshlrev_b32 v4, 1, v0
    s_waitcnt lgkmcnt(0)
    """)
    srd(a, sWS, 34, 0x10000000); srd(a, sQ, 16, 3072); srd(a, sO, 30, 3072)
    a(f"""
    buffer_load_dwordx4 v[8:11], v2, s[{sWS}:{sWS+3}], s7 offen
    buffer_load_dwordx4 v[12:15], v2, s[{sWS}:{sWS+3}], s7 offen offset:16
    """)
    for j in range(4):
        a(f"buffer_load_dword v{16+j}, v3, s[{sWS}:{sWS+3}], s7 offen offset:{512*j}")
    a("s_add_u32 s10, s6, 8192")
    for j in range(4):
        so = 6 if j < 2 else 10
        if j & 1:
            a(f"v_add_u32 v5, 4096, v1")
            a(f"buffer_load_dwordx4 v[{20+4*j}:{23+4*j}], v5, s[{sWS}:{sWS+3}], s{so} offen")
        else:
            a(f"buffer_load_dwordx4 v[{20+4*j}:{23+4*j}], v1, s[{sWS}:{sWS+3}], s{so} offen")
    a(f"""
    buffer_load_ushort v6, v4, s[{sQ}:{sQ+3}], s8 offen
    s_waitcnt vmcnt(9)
    v_max_f32 v36, v8, v10
    v_max3_f32 v36, v36, v12, v14
    """)
    wave_red(a, "max", 36, 37)
    for j in range(4):
        a(f"v_sub_f32 v{8+2*j}, v{8+2*j}, v36")
    for j in range(4):
        a(f"v_exp_f32 v{8+2*j}, v{8+2*j}")
    a(f"""
    v_mul_f32 v38, v8, v9
    v_fmac_f32 v38, v10, v11
    v_fmac_f32 v38, v12, v13
    v_fmac_f32 v38, v14, v15
    """)
    wave_red(a, "add", 38, 37)
    a("s_waitcnt vmcnt(5)")
    for j in range(4):
        a(f"v_sub_f32 v{16+j}, v{16+j}, v36")
    for j in range(4):
        a(f"v_exp_f32 v{16+j}, v{16+j}")
    a("v_rcp_f32 v38, v38")
    a("s_waitcnt vmcnt(1)")
    if stamps: a("s_memrealtime s[52:53]\ns_waitcnt lgkmcnt(0)")
    for r in range(4):
        a(f"v_mul_f32 v{40+r}, v16, v{20+r}")
    for j in range(1, 4):
        for r in range(4):
            a(f"v_fmac_f32 v{40+r}, v{16+j}, v{20+4*j+r}")
    for r in range(4):
        a(f"v_add_f32_dpp v{40+r}, v{40+r}, v{40+r} row_ror:4 row_mask:0xf bank_mask:0xf")
    for r in range(4):
        a(f"v_add_f32_dpp v{40+r}, v{40+r}, v{40+r} row_ror:8 row_mask:0xf bank_mask:0xf")
    a(f"""
    v_lshrrev_b32 v5, 4, v0
    v_lshlrev_b32 v5, 6, v5
    v_and_b32 v7, 3, v0
    v_lshl_add_u32 v5, v7, 4, v5
    ds_write_b128 v5, v[40:43]
    s_waitcnt lgkmcnt(0)
    s_barrier
    v_cmp_gt_u32 vcc, 64, v0
    s_and_saveexec_b64 s[12:13], vcc
    s_cbranch_execz L_rend
    v_lshlrev_b32 v5, 2, v0
    ds_read_b32 v40, v5
    ds_read_b32 v41, v5 offset:256
    ds_read_b32 v42, v5 offset:512
    ds_read_b32 v43, v5 offset:768
    s_waitcnt lgkmcnt(0)
    v_add_f32 v40, v40, v41
    v_add_f32 v42, v42, v43
    v_add_f32 v40, v40, v42
    v_mov_b32 v37, v40
    v_permlane32_swap_b32 v40, v37
    v_add_f32 v40, v40, v37
    v_mov_b32 v37, v40
    v_permlane16_swap_b32 v40, v37
    v_add_f32 v40, v40, v37
    s_waitcnt vmcnt(0)
    v_lshlrev_b32 v6, 16, v6
    v_fma_f32 v40, v40, v38, v6
    v_cvt_pk_bf16_f32 v40, v40, v40
    s_mov_b64 exec, 0xffff
    buffer_store_short v40, v4, s[{sO}:{sO+3}], s8 offen
    """)
    if stamps:
        a(f"""
        s_waitcnt vmcnt(0)
        s_memrealtime s[54:55]
        s_mul_i32 s4, s2, 24
        s_add_u32 s4, s4, 0x9000000
        s_mov_b64 exec, 1
        v_mov_b32 v1, 0
        s_waitcnt lgkmcnt(0)
        """)
        for i in range(3):
            a(f"""
            v_mov_b32 v2, s{50+2*i}
            v_mov_b32 v3, s{51+2*i}
            buffer_store_dwordx2 v[2:3], v1, s[{sWS}:{sWS+3}], s4 offen offset:{8*i}
            """)
    a("""
    L_rend:
    s_endpgm
    """)
    return a.finish(), 48, 64

def kd(name, nv, ns):
    acc = (nv + 3) // 4 * 4
    return f""".p2align 6
.amdhsa_kernel {name}
  .amdhsa_next_free_vgpr {nv}
  .amdhsa_next_free_sgpr {ns}
  .amdhsa_accum_offset {acc}
  .amdhsa_group_segment_fixed_size 0
  .amdhsa_kernarg_size 80
  .amdhsa_user_sgpr_count 2
  .amdhsa_user_sgpr_kernarg_segment_ptr 1
  .amdhsa_system_sgpr_workgroup_id_x 1
  .amdhsa_float_denorm_mode_32 3
.end_amdhsa_kernel
"""

def build(stamps=False):
    m, mv, ms = gen_main(stamps)
    r, rv, rs = gen_red(stamps)
    k1 = NAME + "_kernel"
    k2 = "reduce_kernel"
    out = HDR
    out += f"; @launch kernel={k1} grid=(256,1,1) block=(576,1,1) lds={LDS_TOTAL}\n"
    out += f"; @launch kernel={k2} grid=(96,1,1) block=(256,1,1) lds=1024\n"
    out += '.amdgcn_target "amdgcn-amd-amdhsa--gfx950"\n.text\n'
    for k, body in ((k1, m), (k2, r)):
        out += f".globl {k}\n.p2align 8\n.type {k},@function\n{k}:\n{body}"
    out += '.section .rodata,"a"\n'
    out += kd(k1, mv, ms) + kd(k2, rv, rs)
    return out

if __name__ == "__main__":
    path = sys.argv[1] if len(sys.argv) > 1 else "cdna_kernels/%s.s" % NAME
    open(path, "w").write(build(len(sys.argv) > 2))
    print("LDS", LDS_TOTAL)
```

```python
import sys, struct
from asmgen import Asm
from gen1 import srd, kd, NAME, HDR, f2u, crossg_sum, sd_mimic

XS = 208
QKB = 0
EXB = QKB + 16 * XS
FLB = EXB + 3072
MLB = FLB + 128
STB = MLB + 18 * 512
CNB = STB + 9 * 256
STG = CNB + 1024
SLB = STG + 36864
SLOT = 32 * XS + 1024
NSLOT = 14
LDS_TOTAL = SLB + NSLOT * SLOT
F_Q, F_WV, F_ACC, F_RING, F_CNT, F_CC = 0, 16, 32, 48, 64, 68
CONST = 96 ** -0.5 * 1.4426950408889634
EPOCH_OFF = 0x200000
SENT = 0xffffffff
KW = 5
SPIN_MAX = 1 << 22

def gen(stamps=False, nstamp=8, opts=None):
    o = dict(prefetch=True, f0flags="nt", f1flags="")
    o.update(opts or {})
    a = Asm()
    uid = [0]
    def lab(p):
        uid[0] += 1
        return f"L_{p}{uid[0]}"
    SST = 84
    def stamp(i):
        if stamps:
            a(f"s_memrealtime s[{SST+2*i}:{SST+1+2*i}]")
            if i: a("s_waitcnt lgkmcnt(0)")
    sW = 3
    sF0, sF1, sQ, sWA, sWB, sWS, sOUT = 36, 40, 44, 48, 52, 56, 60
    sLO, sHI, sONE = 64, 65, 66
    sOa, sOb, sO1, sT0, sT1, sT2, sU = 67, 68, 69, 70, 71, 72, 73
    sME, sMQ = 74, 76
    sEP, sTAG, sIT, sK, sSPIN = 78, 79, 80, 81, 82
    sD = 4
    vL, vN, vG, vLin = 1, 2, 3, 4
    vT0, vT1, vT2, vT3 = 6, 7, 8, 9

    def spin_guard(lbl_fail):
        a(f"""
        s_add_u32 s{sSPIN}, s{sSPIN}, 1
        s_cmp_gt_u32 s{sSPIN}, {SPIN_MAX}
        s_cbranch_scc1 {lbl_fail}
        """)

    def wait_flags3(off, vq, vaddr0, sleep=0):
        l = lab("wf")
        a(f"{l}:")
        if sleep: a(f"s_sleep {sleep}")
        spin_guard("L_end")
        a(f"""
        ds_read_b128 v[{vq}:{vq+3}], v{vaddr0} offset:{FLB+off}
        s_waitcnt lgkmcnt(0)
        v_min_u32 v{vq}, v{vq}, v{vq+1}
        v_min_u32 v{vq}, v{vq}, v{vq+2}
        v_cmp_eq_u32 vcc, 0, v{vq}
        s_cbranch_vccnz {l}
        """)

    stamp(0)
    a(f"""
    s_cmp_ge_u32 s2, 256
    s_cbranch_scc1 L_end
    s_load_dwordx16 s[16:31], s[0:1], 0
    s_load_dwordx4 s[32:35], s[0:1], 64
    s_setprio 3
    v_and_b32 v{vL}, 63, v0
    v_lshrrev_b32 v{vT0}, 6, v0
    v_and_b32 v{vN}, 15, v{vL}
    v_readfirstlane_b32 s{sW}, v{vT0}
    v_lshrrev_b32 v{vG}, 4, v{vL}
    v_lshlrev_b32 v{vLin}, 4, v{vL}
    v_mov_b32 v5, 0
    s_mov_b32 s{sSPIN}, 0
    s_mov_b32 s{sLO}, 0x00003f80
    s_mov_b32 s{sHI}, 0x3f800000
    s_mov_b32 s{sONE}, 0x3f803f80
    v_mov_b32 v10, -1
    v_mov_b32 v11, -1
    v_mov_b32 v12, -1
    v_mov_b32 v13, -1
    s_cmp_lt_u32 s{sW}, 3
    s_cbranch_scc1 L_hinit
    s_sub_u32 s{sD}, s{sW}, 3
    s_lshl_b32 s{sT0}, s{sD}, 10
    v_add_u32 v{vT0}, s{sT0}, v{vLin}
    ds_write_b128 v{vT0}, v[10:13] offset:{MLB}
    s_branch L_init_done
    L_hinit:
    s_mov_b32 s{sD}, s{sW}
    v_mul_u32_u24 v{vT0}, {XS}, v{vN}
    ds_write_b128 v{vT0}, v[10:13] offset:{QKB+192}
    v_and_b32 v{vT0}, 31, v{vL}
    v_lshlrev_b32 v{vT0}, 2, v{vT0}
    ds_write_b32 v{vT0}, v5 offset:{FLB}
    """)
    if o["prefetch"]:
        a(f"""
        s_getpc_b64 s[6:7]
        s_and_b32 s6, s6, 0xffffff00
        v_lshlrev_b32 v{vT0}, 7, v{vL}
        s_lshl_b32 s{sT0}, s{sW}, 12
        v_lshrrev_b32 v{vT0}, 1, v{vT0}
        v_add_u32 v{vT0}, s{sT0}, v{vT0}
        v_min_u32 v{vT0}, CODE_LEN, v{vT0}
        global_load_dword v14, v{vT0}, s[6:7]
        """)
    a(f"""
    L_init_done:
    s_waitcnt lgkmcnt(0)
    s_barrier
    """)
    stamp(1)
    srd(a, sWS, 34, 0x10000000)
    srd(a, sQ, 16, 3072)
    a(f"""
    s_add_u32 s6, s34, {EPOCH_OFF}
    s_addc_u32 s7, s35, 0
    s_cmp_lt_u32 s{sW}, 3
    s_cbranch_scc1 L_helper
    """)
    vAf0, vAf1a, vAf1b = 10, 11, 12
    vXw0, vXw1, vXr = 13, 14, 15
    vCw0, vCw1, vCr, vCp, vCml = 16, 17, 18, 19, 20
    vStW, vStR, vRS = 21, 22, 23
    vA1, vA2, vB1, vB2 = 24, 25, 26, 27
    QK = 28; F = 40; R1 = 64; Ra = 76; Rb = 88; XT = 100; AFa = 108; AFb = 120; S = 132; C1 = 140; MN = 148
    NVD = 156
    srd(a, sF1, 20, 7077888); srd(a, sF0, 18, 28311552)
    a(f"""
    v_lshrrev_b32 v{vT0}, 3, v{vL}
    v_and_b32 v{vT1}, 7, v{vL}
    v_lshlrev_b32 v{vT2}, 4, v{vT1}
    v_mul_u32_u24 v{vAf1a}, 192, v{vT0}
    v_lshl_add_u32 v{vAf0}, v{vAf1a}, 1, v{vT2}
    v_cmp_gt_u32 s[{sME}:{sME+1}], 4, v{vT1}
    v_add_u32 v{vT3}, 128, v{vT2}
    v_add_u32 v{vAf1b}, -64, v{vT2}
    v_cndmask_b32 v{vAf1b}, v{vAf1b}, v{vT3}, s[{sME}:{sME+1}]
    v_add_u32 v{vAf1b}, v{vAf1b}, v{vAf1a}
    v_add_u32 v{vAf1a}, v{vAf1a}, v{vT2}
    s_mul_i32 s{sU}, s2, 18
    s_add_u32 s{sU}, s{sU}, s{sD}
    """)
    def issue():
        a(f"""
        s_mul_i32 s{sO1}, s{sU}, 1536
        s_mul_hi_u32 s{sT0}, s{sU}, 0xaaaaaab
        s_mul_i32 s{sT1}, s{sT0}, 24
        s_sub_u32 s{sT1}, s{sU}, s{sT1}
        s_mul_i32 s{sOa}, s{sT0}, 147456
        s_mul_i32 s{sT1}, s{sT1}, 3072
        s_add_u32 s{sOa}, s{sOa}, s{sT1}
        s_add_u32 s{sOb}, s{sOa}, 73728
        buffer_load_dwordx4 v[{R1}:{R1+3}], v{vAf1a}, s[{sF1}:{sF1+3}], s{sO1} offen {o['f1flags']}
        buffer_load_dwordx4 v[{R1+4}:{R1+7}], v{vAf1a}, s[{sF1}:{sF1+3}], s{sO1} offen offset:64 {o['f1flags']}
        buffer_load_dwordx4 v[{R1+8}:{R1+11}], v{vAf1b}, s[{sF1}:{sF1+3}], s{sO1} offen {o['f1flags']}
        """)
        for R, so in ((Ra, sOa), (Rb, sOb)):
            for p, j in enumerate((0, 2, 1)):
                a(f"buffer_load_dwordx4 v[{R+4*p}:{R+4*p+3}], v{vAf0}, s[{sF0}:{sF0+3}], s{so} offen offset:{128*j} {o['f0flags']}")
    a("s_setprio 2")
    issue()
    a(f"""
    s_load_dword s{sEP}, s[6:7], 0
    v_mul_u32_u24 v{vXw0}, {2*XS}, v{vT0}
    v_add_u32 v{vXw0}, v{vXw0}, v{vT2}
    v_add_u32 v{vT3}, 128, v{vXw0}
    v_add_u32 v{vXw1}, 144, v{vXw0}
    v_cndmask_b32 v{vXw1}, v{vXw1}, v{vT3}, s[{sME}:{sME+1}]
    v_mul_u32_u24 v{vXr}, {XS}, v{vN}
    v_lshl_add_u32 v{vXr}, v{vG}, 4, v{vXr}
    v_and_b32 v{vT0}, 1, v{vL}
    v_cmp_eq_u32 s[{sMQ}:{sMQ+1}], 1, v{vT0}
    s_lshl_b32 s{sT0}, s{sD}, 8
    s_add_u32 s{sT0}, s{sT0}, {STB}
    v_lshlrev_b32 v{vT0}, 7, v{vT0}
    v_and_b32 v{vT1}, 60, v{vL}
    v_add3_u32 v{vStW}, v{vT0}, v{vT1}, s{sT0}
    v_lshlrev_b32 v{vStR}, 4, v{vG}
    v_add_u32 v{vStR}, s{sT0}, v{vStR}
    s_mov_b32 s{sIT}, 0
    """)
    stamp(2)
    a("L_dloop:")
    a(f"""
    s_waitcnt vmcnt(6)
    v_mov_b32 v{vT0}, 1
    s_mov_b64 exec, 1
    ds_add_rtn_u32 v{vT1}, v5, v{vT0} offset:{FLB+F_CNT}
    s_mov_b64 exec, -1
    """)
    for i in range(12):
        a(f"v_lshlrev_b32 v{F+2*i}, 16, v{R1+i}")
        a(f"v_and_b32 v{F+2*i+1}, 0xffff0000, v{R1+i}")
    lr = lab("noring")
    a(f"""
    s_waitcnt lgkmcnt(0)
    v_readfirstlane_b32 s{sK}, v{vT1}
    s_cmp_lt_u32 s{sK}, {NSLOT}
    s_cselect_b32 s{sT0}, 0, {NSLOT}
    s_cbranch_scc1 {lr}
    """)
    wait_flags3(F_RING, XT, 5)
    a(f"""
    {lr}:
    s_sub_u32 s{sT0}, s{sK}, s{sT0}
    s_mul_i32 s{sT0}, s{sT0}, {SLOT}
    s_add_u32 s{sT0}, s{sT0}, {SLB}
    v_add_u32 v{vCw0}, s{sT0}, v{vXw0}
    v_add_u32 v{vCw1}, s{sT0}, v{vXw1}
    v_add_u32 v{vCr}, s{sT0}, v{vXr}
    v_add_u32 v{vCp}, s{sT0}, v{vLin}
    s_lshl_b32 s{sT1}, s{sK}, 9
    v_lshlrev_b32 v{vCml}, 3, v{vL}
    v_add_u32 v{vCml}, s{sT1}, v{vCml}
    """)
    def fuse(R, p, T):
        r = R + 4 * p
        for i in range(4):
            a(f"v_dot2_f32_bf16 v{XT+2*i}, v{r+i}, s{sLO}, v{F+8*p+2*i}")
            a(f"v_dot2_f32_bf16 v{XT+2*i+1}, v{r+i}, s{sHI}, v{F+8*p+2*i+1}")
        for i in range(4):
            a(f"v_cvt_pk_bf16_f32 v{r+i}, v{XT+2*i}, v{XT+2*i+1}")
        va, off = ((vCw0, 0), (vCw0, XS + 64), (vCw1, 0))[p]
        a(f"ds_write_b128 v{va}, v[{r}:{r+3}] offset:{T*16*XS + off}")
    def stats_piece(R, p, s1, s2, first):
        r = R + 4 * p
        for i in range(4):
            c1 = "0" if (first and i == 0) else f"v{s1}"
            c2 = "0" if (first and i == 0) else f"v{s2}"
            a(f"v_dot2_f32_bf16 v{s1}, v{r+i}, s{sONE}, {c1}")
            a(f"v_dot2_f32_bf16 v{s2}, v{r+i}, v{r+i}, {c2}")
    def areads(AF, T):
        for kk in range(3):
            a(f"ds_read_b128 v[{AF+4*kk}:{AF+4*kk+3}], v{vCr} offset:{T*16*XS + kk*64}")
    def sreads(T):
        a(f"ds_read_b128 v[{C1+4*T}:{C1+4*T+3}], v{vStR} offset:{T*64}")
        a(f"ds_read_b128 v[{MN+4*T}:{MN+4*T+3}], v{vStR} offset:{128+T*64}")
    def smfma(AF, T):
        for kk in range(3):
            c = "0" if kk == 0 else f"v[{S+4*T}:{S+4*T+3}]"
            a(f"v_mfma_f32_16x16x32_bf16 v[{S+4*T}:{S+4*T+3}], v[{AF+4*kk}:{AF+4*kk+3}], v[{QK+4*kk}:{QK+4*kk+3}], {c}")
    def zcalc(T):
        for r in range(4):
            a(f"v_fma_f32 v{S+4*T+r}, -v{MN+4*T+r}, v{vRS}, v{S+4*T+r}")
        for r in range(4):
            a(f"v_mul_f32 v{S+4*T+r}, v{S+4*T+r}, v{C1+4*T+r}")
    def tile(R, T, AF):
        base = 5 - 3 * T
        a(f"s_waitcnt vmcnt({base})")
        fuse(R, 0, T); stats_piece(R, 0, vA1, vA2, True)
        a(f"s_waitcnt vmcnt({base-1})")
        fuse(R, 1, T); stats_piece(R, 1, vB1, vB2, True)
        a(f"""
        v_cndmask_b32 v{vT0}, v{vA1}, v{vB1}, s[{sME}:{sME+1}]
        v_cndmask_b32 v{vT1}, v{vA2}, v{vB2}, s[{sME}:{sME+1}]
        v_cndmask_b32 v{vA1}, v{vB1}, v{vA1}, s[{sME}:{sME+1}]
        v_cndmask_b32 v{vA2}, v{vB2}, v{vA2}, s[{sME}:{sME+1}]
        v_add_f32_dpp v{vA1}, v{vT0}, v{vA1} row_half_mirror row_mask:0xf bank_mask:0xf
        v_add_f32_dpp v{vA2}, v{vT1}, v{vA2} row_half_mirror row_mask:0xf bank_mask:0xf
        s_waitcnt vmcnt({base-2})
        """)
        if T == 1: stamp(4)
        fuse(R, 2, T)
        if AF is not None: areads(AF, T)
        stats_piece(R, 2, vA1, vA2, False)
        a(f"""
        v_add_f32_dpp v{vA1}, v{vA1}, v{vA1} quad_perm:[1,0,3,2] row_mask:0xf bank_mask:0xf
        v_add_f32_dpp v{vA2}, v{vA2}, v{vA2} quad_perm:[1,0,3,2] row_mask:0xf bank_mask:0xf
        v_mov_b32 v{vT1}, 0x{f2u(1/96):08x}
        v_add_f32_dpp v{vA1}, v{vA1}, v{vA1} quad_perm:[2,3,0,1] row_mask:0xf bank_mask:0xf
        v_add_f32_dpp v{vA2}, v{vA2}, v{vA2} quad_perm:[2,3,0,1] row_mask:0xf bank_mask:0xf
        v_mul_f32 v{vA1}, v{vT1}, v{vA1}
        v_mul_f32 v{vT0}, v{vA1}, v{vA1}
        v_fma_f32 v{vA2}, v{vA2}, v{vT1}, -v{vT0}
        """)
        sd_mimic(a, vA2, vT0)
        a(f"""
        v_rcp_f32 v{vA2}, v{vA2}
        v_mul_f32 v{vA2}, 0x{f2u(CONST):08x}, v{vA2}
        v_cndmask_b32 v{vA1}, v{vA2}, v{vA1}, s[{sMQ}:{sMQ+1}]
        ds_write_b32 v{vStW}, v{vA1} offset:{T*64}
        """)
    def sblock_a():
        areads(AFa, 0); sreads(0)
        a("s_waitcnt lgkmcnt(2)")
        smfma(AFa, 0)
        a("s_waitcnt lgkmcnt(0)")
        zcalc(0)
    tile(Ra, 0, None)
    a(f"""
    s_cmp_eq_u32 s{sIT}, 0
    s_cbranch_scc1 L_skip_sa
    """)
    sblock_a()
    a("L_skip_sa:")
    tile(Rb, 1, AFb)
    sreads(1)
    a(f"""
    s_cmp_lg_u32 s{sIT}, 0
    s_cbranch_scc1 L_skip_first
    s_add_u32 s{sU}, s{sU}, 9
    s_setprio 0
    """)
    issue()
    a("s_setprio 1")
    lq = lab("qk")
    a(f"{lq}:")
    spin_guard("L_end")
    a(f"""
    v_mul_u32_u24 v{vT0}, {XS}, v{vN}
    ds_read_b128 v[{XT}:{XT+3}], v{vT0} offset:{QKB+192}
    """)
    for kk in range(3):
        a(f"ds_read_b128 v[{QK+4*kk}:{QK+4*kk+3}], v{vXr} offset:{QKB + kk*64}")
    a(f"""
    s_waitcnt lgkmcnt(0)
    v_max_u32 v{vT0}, v{XT}, v{XT+1}
    v_max_u32 v{vT0}, v{vT0}, v{XT+2}
    v_cmp_eq_u32 vcc, -1, v{vT0}
    s_cbranch_vccnz {lq}
    v_add_f32 v{vRS}, v{XT}, v{XT+1}
    v_add_f32 v{vRS}, v{vRS}, v{XT+2}
    """)
    stamp(3)
    sblock_a()
    a(f"""
    L_skip_first:
    s_waitcnt lgkmcnt(3)
    """)
    smfma(AFb, 1)
    a(f"""
    v_max_f32 v{vT2}, v{S}, v{S+1}
    v_max3_f32 v{vT2}, v{vT2}, v{S+2}, v{S+3}
    s_waitcnt lgkmcnt(0)
    """)
    zcalc(1)
    a(f"""
    v_max3_f32 v{vT2}, v{vT2}, v{S+4}, v{S+5}
    v_max3_f32 v{vT2}, v{vT2}, v{S+6}, v{S+7}
    v_mov_b32 v{vT0}, v{vT2}
    v_permlane32_swap_b32 v{vT2}, v{vT0}
    v_max_f32 v{vT2}, v{vT2}, v{vT0}
    v_mov_b32 v{vT0}, v{vT2}
    v_permlane16_swap_b32 v{vT2}, v{vT0}
    v_max_f32 v{vT2}, v{vT2}, v{vT0}
    """)
    for i in range(8): a(f"v_sub_f32 v{S+i}, v{S+i}, v{vT2}")
    for i in range(8): a(f"v_exp_f32 v{S+i}, v{S+i}")
    for i in range(8): a(f"v_mul_f32 v{C1+i}, v{S+i}, v{C1+i}")
    for i in range(4): a(f"v_cvt_pk_bf16_f32 v{XT+i}, v{C1+2*i}, v{C1+2*i+1}")
    a(f"""
    ds_write_b128 v{vCp}, v[{XT}:{XT+3}] offset:{32*XS}
    v_add_f32 v{vT3}, v{S}, v{S+1}
    v_add_f32 v{vT0}, v{S+2}, v{S+3}
    v_add_f32 v{vT1}, v{S+4}, v{S+5}
    v_add_f32 v{S+6}, v{S+6}, v{S+7}
    v_add_f32 v{vT3}, v{vT3}, v{vT0}
    v_add_f32 v{vT1}, v{vT1}, v{S+6}
    v_min_u32 v{vT2}, -2, v{vT2}
    v_add_f32 v{vT3}, v{vT3}, v{vT1}
    ds_write_b64 v{vCml}, v[{vT2}:{vT3}] offset:{MLB}
    s_add_u32 s{sIT}, s{sIT}, 1
    s_cmp_lt_u32 s{sIT}, 2
    s_cbranch_scc1 L_dloop
    """)
    stamp(5)
    a(f"""
    s_cmp_ge_u32 s2, 96
    s_cbranch_scc1 L_fin
    s_cmp_ge_u32 s{sD}, 8
    s_cbranch_scc1 L_fin
    s_setprio 0
    """)
    srd(a, sOUT, 30, 3072)
    G0, G1 = 28, 32
    O = 36
    a(f"""
    s_mul_i32 s{sTAG}, s{sEP}, 0x9E3779B1
    s_add_u32 s{sTAG}, s{sTAG}, 0x7F4A7C15
    s_lshl_b32 s{sT0}, s2, 14
    s_lshl_b32 s{sT1}, s{sD}, 11
    s_add_u32 s{sOa}, s{sT0}, s{sT1}
    s_lshl_b32 s{sOb}, s2, 5
    v_lshlrev_b32 v10, 1, v{vN}
    buffer_load_ushort v11, v10, s[{sQ}:{sQ+3}], s{sOb} offen
    """)
    wait_flags3(F_ACC, 40, 5, sleep=2)
    lp = lab("poll")
    a(f"{lp}:")
    spin_guard("L_end")
    a(f"""
    buffer_load_dwordx4 v[{G0}:{G0+3}], v{vLin}, s[{sWS}:{sWS+3}], s{sOa} offen sc1
    buffer_load_dwordx4 v[{G1}:{G1+3}], v{vLin}, s[{sWS}:{sWS+3}], s{sOa} offen offset:1024 sc1
    s_waitcnt vmcnt(0)
    v_bitop3_b32 v{vT0}, v{G0}, v{G0+1}, v{G0+2} bitop3:0x96
    v_bitop3_b32 v{vT1}, v{G1}, v{G1+1}, v{G1+2} bitop3:0x96
    v_bitop3_b32 v{vT0}, v{vT0}, v{G0+3}, s{sTAG} bitop3:0x96
    v_bitop3_b32 v{vT1}, v{vT1}, v{G1+3}, s{sTAG} bitop3:0x96
    v_xor_b32_dpp v{vT2}, v{G0+2}, v{G0+2} quad_perm:[1,2,3,0] row_mask:0xf bank_mask:0xf
    v_xor_b32_dpp v{vT3}, v{G1+2}, v{G1+2} quad_perm:[1,2,3,0] row_mask:0xf bank_mask:0xf
    v_or3_b32 v{vT0}, v{vT0}, v{vT1}, v{vT2}
    v_or_b32 v{vT0}, v{vT0}, v{vT3}
    v_cmp_ne_u32 vcc, 0, v{vT0}
    s_cbranch_vccnz {lp}
    """)
    stamp(6)
    a(f"""
    v_max_f32 v12, v{G0+2}, v{G1+2}
    v_lshlrev_b32 v16, 16, v{G0}
    v_and_b32 v17, 0xffff0000, v{G0}
    v_max_f32_dpp v12, v12, v12 row_ror:4 row_mask:0xf bank_mask:0xf
    v_lshlrev_b32 v18, 16, v{G0+1}
    v_and_b32 v19, 0xffff0000, v{G0+1}
    v_max_f32_dpp v12, v12, v12 row_ror:8 row_mask:0xf bank_mask:0xf
    v_lshlrev_b32 v20, 16, v{G1}
    v_mov_b32 v13, v12
    v_and_b32 v21, 0xffff0000, v{G1}
    v_lshlrev_b32 v22, 16, v{G1+1}
    v_permlane32_swap_b32 v12, v13
    v_max_f32 v12, v12, v13
    v_mov_b32 v13, v12
    v_and_b32 v23, 0xffff0000, v{G1+1}
    v_permlane16_swap_b32 v12, v13
    v_max_f32 v12, v12, v13
    v_sub_f32 v14, v{G0+2}, v12
    v_sub_f32 v15, v{G1+2}, v12
    v_exp_f32 v14, v14
    v_exp_f32 v15, v15
    """)
    for r in range(4): a(f"v_mul_f32 v{O+r}, v14, v{16+r}")
    for r in range(4): a(f"v_fmac_f32 v{O+r}, v15, v{20+r}")
    a(f"v_add_f32 v13, v14, v15")
    regs = [O, O+1, O+2, O+3, 13]
    for rr in (4, 8):
        for r in regs: a(f"v_add_f32_dpp v{r}, v{r}, v{r} row_ror:{rr} row_mask:0xf bank_mask:0xf")
    for sw in ("32", "16"):
        for i, r in enumerate(regs): a(f"v_mov_b32 v{16+i}, v{r}")
        for i, r in enumerate(regs): a(f"v_permlane{sw}_swap_b32 v{r}, v{16+i}")
        for i, r in enumerate(regs): a(f"v_add_f32 v{r}, v{r}, v{16+i}")
    a(f"""
    s_lshl_b32 s{sT0}, s{sD}, 6
    v_add_u32 v{vT0}, s{sT0}, v{vLin}
    s_lshl_b32 s{sT0}, s{sD}, 3
    v_mov_b32 v{vT1}, s{sT0}
    v_mov_b32 v{vT2}, 1
    s_mov_b64 exec, 15
    ds_write_b128 v{vT0}, v[{O}:{O+3}] offset:{CNB}
    s_mov_b64 exec, 1
    ds_write_b64 v{vT1}, v[12:13] offset:{CNB+512}
    ds_add_rtn_u32 v{vT3}, v5, v{vT2} offset:{FLB+F_CC}
    s_mov_b64 exec, -1
    v_lshlrev_b32 v{vT0}, 2, v{vL}
    v_lshlrev_b32 v{vT1}, 3, v{vG}
    ds_read_b32 v16, v{vT0} offset:{CNB}
    ds_read_b32 v17, v{vT0} offset:{CNB+256}
    ds_read_b64 v[18:19], v{vT1} offset:{CNB+512}
    ds_read_b64 v[20:21], v{vT1} offset:{CNB+512+32}
    s_waitcnt lgkmcnt(0)
    v_readfirstlane_b32 s{sT0}, v{vT3}
    s_cmp_lg_u32 s{sT0}, 7
    s_cbranch_scc1 L_fin
    v_max_f32 v12, v18, v20
    v_mov_b32 v13, v12
    v_permlane32_swap_b32 v12, v13
    v_max_f32 v12, v12, v13
    v_mov_b32 v13, v12
    v_permlane16_swap_b32 v12, v13
    v_max_f32 v12, v12, v13
    v_sub_f32 v18, v18, v12
    v_sub_f32 v20, v20, v12
    v_exp_f32 v18, v18
    v_exp_f32 v20, v20
    v_mul_f32 v16, v16, v18
    v_mul_f32 v19, v19, v18
    v_fmac_f32 v16, v17, v20
    v_fmac_f32 v19, v21, v20
    v_mov_b32 v13, v16
    v_mov_b32 v14, v19
    v_permlane32_swap_b32 v16, v13
    v_permlane32_swap_b32 v19, v14
    v_add_f32 v16, v16, v13
    v_add_f32 v19, v19, v14
    v_mov_b32 v13, v16
    v_mov_b32 v14, v19
    v_permlane16_swap_b32 v16, v13
    v_permlane16_swap_b32 v19, v14
    v_add_f32 v19, v19, v14
    v_add_f32 v16, v16, v13
    v_rcp_f32 v19, v19
    v_lshlrev_b32 v11, 16, v11
    v_fma_f32 v16, v16, v19, v11
    v_cvt_pk_bf16_f32 v16, v16, v16
    s_mov_b64 exec, 0xffff
    buffer_store_short v16, v10, s[{sOUT}:{sOUT+3}], s{sOb} offen
    s_cmp_lg_u32 s2, 0
    s_cbranch_scc1 L_fin
    s_add_u32 s{sEP}, s{sEP}, 1
    v_mov_b32 v{vT0}, s{sEP}
    v_mov_b32 v{vT1}, {EPOCH_OFF}
    s_mov_b64 exec, 1
    buffer_store_dword v{vT0}, v{vT1}, s[{sWS}:{sWS+3}], 0 offen
    s_branch L_fin
    """)
    hAq, hAc, hTr, hAw, hM, hLa, hOne, hFl = 10, 11, 12, 13, 14, 15, 16, 17
    hX, hMl = 18, 19
    ACC = 20; D = 28; XF = 36; PF = 44; ML = 48; RQ = 52; WVO = 64; FA = 88; DW = 112
    NVH = 160
    a("L_helper:")
    srd(a, sWA, 22, 18432); srd(a, sWB, 24, 18432)
    def stage():
        a(f"s_lshl_b32 s{sT0}, s{sD}, 6")
        for j in range(6):
            a(f"s_add_u32 m0, s{sT2}, {STG + 1024*j}")
            a(f"buffer_load_dwordx4 v{hAc}, s[{sWA}:{sWA+3}], s{sT0} offen lds")
            if j < 5: a(f"s_add_u32 s{sT0}, s{sT0}, 3072")
        a(f"s_add_u32 m0, s{sT2}, {STG + 18432}")
        for j in range(4):
            a(f"buffer_load_dwordx4 v{vLin}, s[{sWB}:{sWB+3}], s{sT2} offen offset:{1024*j} lds")
        a(f"s_add_u32 m0, s{sT2}, {STG + 18432 + 4096}")
        a(f"s_add_u32 s{sT0}, s{sT2}, 4096")
        for j in range(2):
            a(f"buffer_load_dwordx4 v{vLin}, s[{sWB}:{sWB+3}], s{sT0} offen offset:{1024*j} lds")
    a(f"""
    v_mul_u32_u24 v{hAq}, 192, v{vN}
    v_lshl_add_u32 v{hAq}, v{vG}, 4, v{hAq}
    v_lshrrev_b32 v{vT0}, 2, v{vL}
    v_and_b32 v{vT1}, 3, v{vL}
    v_mul_u32_u24 v{hAc}, 192, v{vT0}
    v_lshl_add_u32 v{hAc}, v{vT1}, 4, v{hAc}
    s_mul_i32 s{sT2}, s{sD}, 6144
    """)
    for kk in range(3):
        a(f"buffer_load_dwordx4 v[{RQ+4*kk}:{RQ+4*kk+3}], v{hAq}, s[{sQ}:{sQ+3}], 0 offen offset:{64*kk}")
    stage()
    a(f"""
    s_load_dword s{sEP}, s[6:7], 0
    v_lshrrev_b32 v{vT0}, 2, v{vN}
    v_lshl_add_u32 v{vT0}, v{vG}, 3, v{vT0}
    v_lshlrev_b32 v{hTr}, 6, v{vT0}
    v_lshl_add_u32 v{hTr}, v{vT1}, 3, v{hTr}
    v_add_u32 v{hTr}, s{sT2}, v{hTr}
    v_mov_b32 v{hOne}, 1
    s_lshl_b32 s{sT0}, s{sD}, 2
    v_mov_b32 v{hFl}, s{sT0}
    s_waitcnt vmcnt(12)
    """)
    stamp(2)
    vS1, vS2 = vT2, vT3
    for i in range(12):
        c1 = "0" if i == 0 else f"v{vS1}"
        c2 = "0" if i == 0 else f"v{vS2}"
        a(f"v_dot2_f32_bf16 v{vS1}, v{RQ+i}, s{sONE}, {c1}")
        a(f"v_dot2_f32_bf16 v{vS2}, v{RQ+i}, v{RQ+i}, {c2}")
    crossg_sum(a, vS1, vT0)
    crossg_sum(a, vS2, vT0)
    a(f"""
    v_mul_f32 v{vS1}, 0x{f2u(1/96):08x}, v{vS1}
    v_mul_f32 v{vT0}, v{vS1}, v{vS1}
    v_mov_b32 v{vT1}, 0x{f2u(1/96):08x}
    v_fma_f32 v{vS2}, v{vS2}, v{vT1}, -v{vT0}
    """)
    sd_mimic(a, vS2, vT0)
    a(f"""
    v_rcp_f32 v{vS2}, v{vS2}
    v_sub_f32 v{vS1}, 0, v{vS1}
    """)
    for i in range(12):
        a(f"v_dot2_f32_bf16 v{DW+2*i}, v{RQ+i}, s{sLO}, v{vS1}")
        a(f"v_dot2_f32_bf16 v{DW+2*i+1}, v{RQ+i}, s{sHI}, v{vS1}")
    for i in range(12):
        a(f"v_mul_f32 v{DW+2*i}, v{DW+2*i}, v{vS2}")
        a(f"v_mul_f32 v{DW+2*i+1}, v{DW+2*i+1}, v{vS2}")
        a(f"v_cvt_pk_bf16_f32 v{RQ+i}, v{DW+2*i}, v{DW+2*i+1}")
    def trfrags(dst):
        for t in range(2):
            for kk in range(3):
                for h in range(2):
                    r = dst + 12 * t + 4 * kk + 2 * h
                    a(f"ds_read_b64_tr_b16 v[{r}:{r+1}], v{hTr} offset:{STG + kk*2048 + h*256 + t*32}")
    def setflag(off):
        a(f"""
        s_mov_b64 exec, 1
        ds_write_b32 v{hFl}, v{hOne} offset:{FLB+off}
        s_mov_b64 exec, -1
        """)
    def exchange(src, flag):
        for i in range(4): a(f"v_cvt_pk_bf16_f32 v{PF+i}, v{src+2*i}, v{src+2*i+1}")
        a(f"ds_write_b128 v{hAw}, v[{PF}:{PF+3}] offset:{EXB}")
        setflag(flag)
    def gather(flag):
        l = lab("ex")
        a(f"{l}:")
        spin_guard("L_end")
        a(f"ds_read_b128 v[{XF}:{XF+3}], v5 offset:{FLB+flag}")
        for kk in range(3):
            a(f"ds_read_b128 v[{RQ+4*kk}:{RQ+4*kk+3}], v{vLin} offset:{EXB + 1024*kk}")
        a(f"""
        s_waitcnt lgkmcnt(0)
        v_min_u32 v{XF}, v{XF}, v{XF+1}
        v_min_u32 v{XF}, v{XF}, v{XF+2}
        v_cmp_eq_u32 vcc, 0, v{XF}
        s_cbranch_vccnz {l}
        """)
    def mm2(Areg, Breg, dst):
        for kk in range(3):
            for t in range(2):
                c = "0" if kk == 0 else f"v[{dst+4*t}:{dst+4*t+3}]"
                a(f"v_mfma_f32_16x16x32_bf16 v[{dst+4*t}:{dst+4*t+3}], v[{Areg+12*t+4*kk}:{Areg+12*t+4*kk+3}], v[{Breg+4*kk}:{Breg+4*kk+3}], {c}")
    a(f"""
    s_lshl_b32 s{sT0}, s{sD}, 10
    v_add_u32 v{hAw}, s{sT0}, v{vLin}
    s_waitcnt vmcnt(6)
    """)
    trfrags(FA)
    a("s_waitcnt lgkmcnt(0)")
    mm2(FA, RQ, D)
    exchange(D, F_Q)
    a(f"""
    v_mul_u32_u24 v{vT0}, 192, v{vN}
    v_lshl_add_u32 v{vT0}, v{vG}, 3, v{vT0}
    v_add_u32 v{vT0}, s{sT2}, v{vT0}
    s_waitcnt vmcnt(0)
    """)
    for t in range(2):
        for kk in range(3):
            for h in range(2):
                r = FA + 12 * t + 4 * kk + 2 * h
                a(f"ds_read_b64 v[{r}:{r+1}], v{vT0} offset:{STG + 18432 + t*3072 + kk*64 + h*32}")
    a("s_waitcnt lgkmcnt(0)")
    gather(F_Q)
    mm2(FA, RQ, D)
    srd(a, sWA, 28, 18432); srd(a, sWB, 26, 18432)
    a(f"""
    v_mul_u32_u24 v{vT0}, {XS}, v{vN}
    v_lshl_add_u32 v{vT1}, v{vG}, 3, v{vT0}
    s_lshl_b32 s{sT0}, s{sD}, 6
    v_add_u32 v{vT1}, s{sT0}, v{vT1}
    v_add_u32 v{vT0}, v{vT0}, v{hFl}
    """)
    for i in range(4): a(f"v_cvt_pk_bf16_f32 v{PF+i}, v{D+2*i}, v{D+2*i+1}")
    a(f"""
    ds_write_b64 v{vT1}, v[{PF}:{PF+1}] offset:{QKB}
    ds_write_b64 v{vT1}, v[{PF+2}:{PF+3}] offset:{QKB+32}
    v_dot2_f32_bf16 v{vT2}, v{PF}, s{sONE}, 0
    v_dot2_f32_bf16 v{vT2}, v{PF+1}, s{sONE}, v{vT2}
    v_dot2_f32_bf16 v{vT2}, v{PF+2}, s{sONE}, v{vT2}
    v_dot2_f32_bf16 v{vT2}, v{PF+3}, s{sONE}, v{vT2}
    """)
    crossg_sum(a, vT2, vT3)
    a(f"""
    v_min_u32 v{vT2}, -2, v{vT2}
    ds_write_b32 v{vT0}, v{vT2} offset:{QKB+192}
    s_setprio 1
    """)
    stamp(3)
    stage()
    a(f"""
    s_setprio 3
    v_lshrrev_b32 v{vT0}, 2, v{vN}
    v_lshl_add_u32 v{vT0}, v{vG}, 2, v{vT0}
    v_mul_u32_u24 v{hX}, {XS}, v{vT0}
    v_and_b32 v{vT1}, 3, v{vL}
    v_lshl_add_u32 v{hX}, v{vT1}, 3, v{hX}
    s_lshl_b32 s{sT0}, s{sD}, 6
    v_add_u32 v{hX}, s{sT0}, v{hX}
    v_lshlrev_b32 v{hMl}, 3, v{vL}
    v_mov_b32 v{hM}, 0xf149f2ca
    v_mov_b32 v{hLa}, 0
    """)
    for i in range(8): a(f"v_mov_b32 v{ACC+i}, 0")
    a(f"""
    s_mov_b32 s{sK}, 0
    s_mov_b32 s{sOa}, {SLB}
    L_hloop:
    v_add_u32 v{vT2}, s{sOa}, v{hX}
    v_add_u32 v{vT3}, s{sOa}, v{vLin}
    L_hpoll:
    """)
    spin_guard("L_end")
    a(f"""
    ds_read_b64 v[{ML}:{ML+1}], v{hMl} offset:{MLB}
    s_waitcnt lgkmcnt(0)
    v_cmp_eq_u32 vcc, -1, v{ML}
    s_cbranch_vccnz L_hpoll
    ds_read_b128 v[{PF}:{PF+3}], v{vT3} offset:{32*XS}
    """)
    for t in range(2):
        for h in range(2):
            r = XF + 4 * t + 2 * h
            a(f"ds_read_b64_tr_b16 v[{r}:{r+1}], v{vT2} offset:{t*32 + h*16*XS}")
    a(f"""
    v_max_f32 v{vT0}, v{hM}, v{ML}
    v_sub_f32 v{hM}, v{hM}, v{vT0}
    v_sub_f32 v{ML}, v{ML}, v{vT0}
    v_exp_f32 v{vT1}, v{hM}
    v_exp_f32 v{ML}, v{ML}
    v_mov_b32 v{hM}, v{vT0}
    v_add_u32 v{hMl}, 512, v{hMl}
    s_waitcnt lgkmcnt(2)
    v_mfma_f32_16x16x32_bf16 v[{D}:{D+3}], v[{XF}:{XF+3}], v[{PF}:{PF+3}], 0
    s_waitcnt lgkmcnt(0)
    v_mfma_f32_16x16x32_bf16 v[{D+4}:{D+7}], v[{XF+4}:{XF+7}], v[{PF}:{PF+3}], 0
    v_mul_f32 v{hLa}, v{hLa}, v{vT1}
    """)
    for i in range(8): a(f"v_mul_f32 v{ACC+i}, v{ACC+i}, v{vT1}")
    a(f"v_fmac_f32 v{hLa}, v{ML}, v{ML+1}")
    for i in range(8): a(f"v_fmac_f32 v{ACC+i}, v{ML}, v{D+i}")
    a(f"""
    s_add_u32 s{sOa}, s{sOa}, {SLOT}
    s_cmp_eq_u32 s{sK}, {NSLOT-1}
    s_cselect_b32 s{sOa}, {SLB}, s{sOa}
    s_add_u32 s{sK}, s{sK}, 1
    s_cmp_eq_u32 s{sK}, 18
    s_cbranch_scc1 L_hfin
    s_cmp_lg_u32 s{sK}, {KW+1}
    s_cbranch_scc1 L_hloop
    """)
    setflag(F_RING)
    a("s_waitcnt vmcnt(0)")
    setflag(F_WV)
    trfrags(WVO)
    wait_flags3(F_WV, XF, 5)
    for half in range(3):
        for cti in range(2):
            ct = 2 * half + cti
            for kk in range(3):
                r = FA + 12 * cti + 4 * kk
                a(f"ds_read_b128 v[{r}:{r+3}], v{hAq} offset:{STG + 18432 + ct*3072 + kk*64}")
        a("s_waitcnt lgkmcnt(0)")
        for kk in range(3):
            for cti in range(2):
                ct = 2 * half + cti
                r = FA + 12 * cti + 4 * kk
                for t in range(2):
                    d = DW + 24 * t + 4 * ct
                    c = "0" if kk == 0 else f"v[{d}:{d+3}]"
                    a(f"v_mfma_f32_16x16x32_bf16 v[{d}:{d+3}], v[{r}:{r+3}], v[{WVO+12*t+4*kk}:{WVO+12*t+4*kk+3}], {c}")
    for t, acc in ((0, vT2), (1, vT3)):
        a(f"v_add_f32 v{acc}, v{DW+24*t}, v{DW+24*t+1}")
        for i in range(2, 24): a(f"v_add_f32 v{acc}, v{acc}, v{DW+24*t+i}")
        crossg_sum(a, acc, vT0)
        a(f"v_mul_f32 v{acc}, 0x{f2u(1/96):08x}, v{acc}")
        for i in range(24): a(f"v_sub_f32 v{DW+24*t+i}, v{DW+24*t+i}, v{acc}")
        for i in range(12): a(f"v_cvt_pk_bf16_f32 v{WVO+12*t+i}, v{DW+24*t+2*i}, v{DW+24*t+2*i+1}")
    stamp(4)
    a(f"""
    s_mul_i32 s{sTAG}, s{sEP}, 0x9E3779B1
    s_add_u32 s{sTAG}, s{sTAG}, 0x7F4A7C15
    s_and_b32 s{sT0}, s2, 7
    s_lshl_b32 s{sT0}, s{sT0}, 5
    s_lshr_b32 s{sT1}, s2, 3
    s_add_u32 s{sT0}, s{sT0}, s{sT1}
    s_lshl_b32 s{sT0}, s{sT0}, 6
    s_lshl_b32 s{sT1}, s{sD}, 15
    s_add_u32 s{sOb}, s{sT0}, s{sT1}
    s_add_u32 s{sO1}, s{sOb}, 16384
    v_mul_u32_u24 v{hAc}, {6*16384}, v{vN}
    v_lshl_add_u32 v{hAc}, v{vG}, 4, v{hAc}
    s_branch L_hloop
    L_hfin:
    """)
    stamp(5)
    exchange(ACC, F_ACC)
    crossg_sum(a, hLa, vT0)
    a(f"""
    v_log_f32 v{vT2}, v{hLa}
    v_mul_f32 v{hLa}, 0x{f2u(CONST):08x}, v{hLa}
    v_rcp_f32 v{hLa}, v{hLa}
    v_add_f32 v{ACC+2}, v{hM}, v{vT2}
    v_add_f32 v{ACC+6}, v{hM}, v{vT2}
    v_xor_b32 v{vT3}, s{sTAG}, v{ACC+2}
    """)
    gather(F_ACC)
    mm2(WVO, RQ, D)
    for t in range(2):
        for i in range(4): a(f"v_mul_f32 v{D+4*t+i}, v{D+4*t+i}, v{hLa}")
        a(f"""
        v_cvt_pk_bf16_f32 v{ACC+4*t}, v{D+4*t}, v{D+4*t+1}
        v_cvt_pk_bf16_f32 v{ACC+4*t+1}, v{D+4*t+2}, v{D+4*t+3}
        v_bitop3_b32 v{ACC+4*t+3}, v{ACC+4*t}, v{ACC+4*t+1}, v{vT3} bitop3:0x96
        buffer_store_dwordx4 v[{ACC+4*t}:{ACC+4*t+3}], v{hAc}, s[{sWS}:{sWS+3}], s{sOb if t == 0 else sO1} offen sc1
        """)
    stamp(6)
    a("L_fin:")
    if stamps:
        a("s_waitcnt vmcnt(0)")
        stamp(7)
        a(f"""
        s_mul_i32 s{sT0}, s2, 12
        s_add_u32 s{sT0}, s{sT0}, s{sW}
        s_mul_i32 s{sT0}, s{sT0}, {8*nstamp}
        s_add_u32 s{sT0}, s{sT0}, 0x8000000
        s_sleep 127
        s_mov_b64 exec, 1
        """)
        for i in range(nstamp):
            a(f"""
            v_mov_b32 v2, s{SST+2*i}
            v_mov_b32 v3, s{SST+1+2*i}
            buffer_store_dwordx2 v[2:3], v5, s[{sWS}:{sWS+3}], s{sT0} offen offset:{8*i}
            """)
    a("""
    L_end:
    s_endpgm
    """)
    return a.finish(), max(NVD, NVH), 102

def build(stamps=False, opts=None):
    m, mv, ms = gen(stamps, opts=opts)
    k1 = NAME + "_kernel"
    out = HDR
    out += f"; @launch grid=(256,1,1) block=(768,1,1) lds={LDS_TOTAL}\n"
    out += '.amdgcn_target "amdgcn-amd-amdhsa--gfx950"\n.text\n'
    out += f".set CODE_LEN, L_end - {k1}\n"
    out += f".globl {k1}\n.p2align 8\n.type {k1},@function\n{k1}:\n{m}"
    out += '.section .rodata,"a"\n'
    out += kd(k1, mv, ms)
    return out

if __name__ == "__main__":
    path = sys.argv[1] if len(sys.argv) > 1 else "cdna_kernels/%s.s" % NAME
    open(path, "w").write(build(len(sys.argv) > 2 and sys.argv[2] == "stamps"))
    print("LDS", LDS_TOTAL)
```

```python
import sys
from gen1 import kd, NAME
def wrap(src, K, first_nop=True, big=False):
    lines = src.split("\n")
    i = max(i for i, l in enumerate(lines) if l.startswith("; @launch"))
    lines[i] = lines[i].replace("@launch ", f"@launch kernel={NAME}_kernel ")
    lines.insert(i + 1, "; @launch kernel=spin2_kernel grid=(1,1,1) block=(64,1,1) lds=0")
    if big: lines.insert(i, "; @launch kernel=nop0_kernel grid=(256,1,1) block=(768,1,1) lds=163456")
    else: lines.insert(i, "; @launch kernel=nop0_kernel grid=(1,1,1) block=(64,1,1) lds=0")
    s = "\n".join(lines)
    nop0 = """
    s_memrealtime s[8:9]
    s_cmp_ge_u32 s2, 1
    s_cbranch_scc1 LN_end
    s_load_dwordx2 s[4:5], s[0:1], 72
    v_cmp_eq_u32 vcc, 0, v0
    s_and_saveexec_b64 s[10:11], vcc
    s_cbranch_execz LN_end
    v_mov_b32 v1, 0x9000000
    s_waitcnt lgkmcnt(0)
    v_mov_b32 v2, s8
    global_store_dword v1, v2, s[4:5]
LN_end:
    s_endpgm
"""
    spin2 = f"""
    s_cmp_ge_u32 s2, 1
    s_cbranch_scc1 LS_end
    s_load_dwordx2 s[4:5], s[0:1], 72
    v_mov_b32 v1, 0x9000000
    s_waitcnt lgkmcnt(0)
    global_load_dword v2, v1, s[4:5]
    s_waitcnt vmcnt(0)
    v_readfirstlane_b32 s6, v2
    s_memrealtime s[8:9]
    s_waitcnt lgkmcnt(0)
    s_sub_u32 s6, s8, s6
    s_min_u32 s6, s6, 5000
    s_mul_i32 s6, s6, {K}
LS_spin:
    s_memrealtime s[10:11]
    s_waitcnt lgkmcnt(0)
    s_sub_u32 s12, s10, s8
    s_cmp_lt_u32 s12, s6
    s_cbranch_scc1 LS_spin
LS_end:
    s_endpgm
"""
    s = s.replace('.section .rodata,"a"\n', '.globl nop0_kernel\n.p2align 8\n.type nop0_kernel,@function\nnop0_kernel:\n' + nop0 + '.globl spin2_kernel\n.p2align 8\n.type spin2_kernel,@function\nspin2_kernel:\n' + spin2 + '.section .rodata,"a"\n')
    s += kd("nop0_kernel", 160 if big else 8, 24) + kd("spin2_kernel", 8, 24)
    return s
src = open(sys.argv[1]).read()
open("ov_s0.s", "w").write(wrap(src, 0)); open("ov_s10.s", "w").write(wrap(src, 10))
open("ov_b0.s", "w").write(wrap(src, 0, big=True)); open("ov_b10.s", "w").write(wrap(src, 10, big=True))
```

```python
import sys, struct
from asmgen import Asm
from gen1 import srd, kd, NAME, HDR, f2u, crossg_sum, sd_mimic

XS = 208
QKB = 0
EXB = QKB + 16 * XS
FLB = EXB + 3072
MLB = FLB + 128
STB = MLB + 18 * 512
CNB = STB + 9 * 256
STG = CNB + 1024
SLB = STG + 36864
SLOT = 32 * XS + 1024
NSLOT = 13
STA = SLB + 9 * SLOT
LDS_TOTAL = STA + 36864
F_Q, F_ACC, F_RING, F_WV, F_CNT, F_CC = 0, 16, 32, 48, 64, 68
CONST = 96 ** -0.5 * 1.4426950408889634
EPOCH_OFF = 0x200000
SPIN_MAX = 1 << 22
ROLES = {0: 12, 1: 13, 2: 14, 3: 0, 4: 1, 5: 2, 6: 3, 7: 4, 8: 5, 9: 6, 10: 7, 11: 8}

def gen(stamps=False, nstamp=9, opts=None):
    o = dict(prefetch=True, f0flags="nt", f1flags="", KW=6, pretouch=True, wprio=1, roles=ROLES, wearly=False, wvoprio=3, nd=6)
    o.update(opts or {})
    KW = o["KW"]
    NW = o["nd"] + 3
    a = Asm()
    uid = [0]
    def lab(p):
        uid[0] += 1
        return f"L_{p}{uid[0]}"
    SST = 84
    def stamp(i):
        if stamps:
            a(f"s_memrealtime s[{SST+2*i}:{SST+1+2*i}]")
            if i: a("s_waitcnt lgkmcnt(0)")
    sW = 3
    sF0, sF1, sQ, sWA, sWB, sWS, sOUT = 36, 40, 44, 48, 52, 56, 60
    sLO, sHI, sONE = 64, 65, 66
    sOa, sOb, sO1, sT0, sT1, sT2, sU = 67, 68, 69, 70, 71, 72, 73
    sME, sMQ = 74, 76
    sEP, sTAG, sIT, sK, sSPIN, sC = 78, 79, 80, 81, 82, 83
    sD = 4
    vL, vN, vG, vLin = 1, 2, 3, 4
    vT0, vT1, vT2, vT3 = 6, 7, 8, 9

    def spin_guard():
        a(f"""
        s_add_u32 s{sSPIN}, s{sSPIN}, 1
        s_cmp_gt_u32 s{sSPIN}, {SPIN_MAX}
        s_cbranch_scc1 L_end
        """)
    def wait_flags3(off, vq, sleep=0):
        l = lab("wf")
        a(f"s_branch {l}_in\n{l}:")
        if sleep: a(f"s_sleep {sleep}")
        spin_guard()
        a(f"""
        {l}_in:
        ds_read_b128 v[{vq}:{vq+3}], v5 offset:{FLB+off}
        s_waitcnt lgkmcnt(0)
        v_min_u32 v{vq}, v{vq}, v{vq+1}
        v_min_u32 v{vq}, v{vq}, v{vq+2}
        v_cmp_eq_u32 vcc, 0, v{vq}
        s_cbranch_vccnz {l}
        """)
    tab = sum(v << (4 * k) for k, v in o["roles"].items())
    stamp(0)
    a(f"""
    s_cmp_ge_u32 s2, 256
    s_cbranch_scc1 L_end
    s_load_dwordx16 s[16:31], s[0:1], 0
    s_load_dwordx4 s[32:35], s[0:1], 64
    s_setprio 3
    v_and_b32 v{vL}, 63, v0
    v_lshrrev_b32 v{vT0}, 6, v0
    v_and_b32 v{vN}, 15, v{vL}
    v_readfirstlane_b32 s{sW}, v{vT0}
    v_lshrrev_b32 v{vG}, 4, v{vL}
    v_lshlrev_b32 v{vLin}, 4, v{vL}
    v_mov_b32 v5, 0
    s_mov_b32 s{sSPIN}, 0
    s_mov_b32 s{sLO}, 0x00003f80
    s_mov_b32 s{sHI}, 0x3f800000
    s_mov_b32 s{sONE}, 0x3f803f80
    v_mov_b32 v10, -1
    v_mov_b32 v11, -1
    v_mov_b32 v12, -1
    v_mov_b32 v13, -1
    v_lshlrev_b32 v{vT0}, 4, v0
    ds_write_b128 v{vT0}, v[10:13] offset:{MLB}
    ds_write_b128 v{vT0}, v[10:13] offset:{MLB + max(0, 9216 - NW*1024)}
    s_mov_b32 s6, 0x{tab & 0xffffffff:08x}
    s_mov_b32 s7, 0x{tab >> 32:x}
    s_lshl_b32 s{sT0}, s{sW}, 2
    s_lshr_b64 s[6:7], s[6:7], s{sT0}
    s_and_b32 s{sD}, s6, 15
    s_cmp_ge_u32 s{sD}, 12
    s_cbranch_scc1 L_helper
    """)
    vAf0, vAf1a, vAf1b = 10, 11, 12
    vXw0, vXw1, vXr = 13, 14, 15
    vCw0, vCw1, vCr, vCp, vCml = 16, 17, 18, 19, 20
    vStW, vStR, vRS = 21, 22, 23
    vA1, vA2, vB1, vB2 = 24, 25, 26, 27
    QK = 28; F = 40; R1 = 64; Ra = 76; Rb = 88; XT = 100; AFa = 108; AFb = 120; S = 132; C1 = 140; MN = 148
    NVD = 156
    def offsets():
        a(f"""
        s_mul_i32 s{sO1}, s{sU}, 1536
        s_mul_hi_u32 s{sT0}, s{sU}, 0xaaaaaab
        s_mul_i32 s{sT1}, s{sT0}, 24
        s_sub_u32 s{sT1}, s{sU}, s{sT1}
        s_mul_i32 s{sOa}, s{sT0}, 147456
        s_mul_i32 s{sT1}, s{sT1}, 3072
        s_add_u32 s{sOa}, s{sOa}, s{sT1}
        s_add_u32 s{sOb}, s{sOa}, 73728
        """)
    def issue_f1():
        a(f"""
        buffer_load_dwordx4 v[{R1}:{R1+3}], v{vAf1a}, s[{sF1}:{sF1+3}], s{sO1} offen {o['f1flags']}
        buffer_load_dwordx4 v[{R1+4}:{R1+7}], v{vAf1a}, s[{sF1}:{sF1+3}], s{sO1} offen offset:64 {o['f1flags']}
        buffer_load_dwordx4 v[{R1+8}:{R1+11}], v{vAf1b}, s[{sF1}:{sF1+3}], s{sO1} offen {o['f1flags']}
        """)
    def issue_t(R, so):
        for p, j in enumerate((0, 2, 1)):
            a(f"buffer_load_dwordx4 v[{R+4*p}:{R+4*p+3}], v{vAf0}, s[{sF0}:{sF0+3}], s{so} offen offset:{128*j} {o['f0flags']}")
    a(f"""
    v_lshrrev_b32 v{vT0}, 3, v{vL}
    v_and_b32 v{vT1}, 7, v{vL}
    v_lshlrev_b32 v{vT2}, 4, v{vT1}
    v_mul_u32_u24 v{vAf1a}, 192, v{vT0}
    v_lshl_add_u32 v{vAf0}, v{vAf1a}, 1, v{vT2}
    v_cmp_gt_u32 s[{sME}:{sME+1}], 4, v{vT1}
    v_add_u32 v{vT3}, 128, v{vT2}
    v_add_u32 v{vAf1b}, -64, v{vT2}
    v_cndmask_b32 v{vAf1b}, v{vAf1b}, v{vT3}, s[{sME}:{sME+1}]
    v_add_u32 v{vAf1b}, v{vAf1b}, v{vAf1a}
    v_add_u32 v{vAf1a}, v{vAf1a}, v{vT2}
    s_mul_i32 s{sU}, s2, 18
    s_add_u32 s{sU}, s{sU}, s{sD}
    """)
    offsets()
    a("s_waitcnt lgkmcnt(0)")
    srd(a, sF1, 20, 7077888); srd(a, sF0, 18, 28311552)
    a("s_setprio 2\ns_barrier")
    stamp(1)
    issue_f1(); issue_t(Ra, sOa); issue_t(Rb, sOb)
    srd(a, sWS, 34, 0x10000000)
    srd(a, sQ, 16, 3072)
    a(f"""
    s_add_u32 s6, s34, {EPOCH_OFF}
    s_addc_u32 s7, s35, 0
    s_load_dword s{sEP}, s[6:7], 0
    v_mul_u32_u24 v{vXw0}, {2*XS}, v{vT0}
    v_add_u32 v{vXw0}, v{vXw0}, v{vT2}
    v_add_u32 v{vT3}, 128, v{vXw0}
    v_add_u32 v{vXw1}, 144, v{vXw0}
    v_cndmask_b32 v{vXw1}, v{vXw1}, v{vT3}, s[{sME}:{sME+1}]
    v_mul_u32_u24 v{vXr}, {XS}, v{vN}
    v_lshl_add_u32 v{vXr}, v{vG}, 4, v{vXr}
    v_and_b32 v{vT0}, 1, v{vL}
    v_cmp_eq_u32 s[{sMQ}:{sMQ+1}], 1, v{vT0}
    s_lshl_b32 s{sT0}, s{sD}, 8
    s_add_u32 s{sT0}, s{sT0}, {STB}
    v_lshlrev_b32 v{vT0}, 7, v{vT0}
    v_and_b32 v{vT1}, 60, v{vL}
    v_add3_u32 v{vStW}, v{vT0}, v{vT1}, s{sT0}
    v_lshlrev_b32 v{vStR}, 4, v{vG}
    v_add_u32 v{vStR}, s{sT0}, v{vStR}
    s_mov_b32 s{sIT}, 0
    s_mov_b32 s{sC}, s{sD}
    """)
    stamp(2)
    a("L_dloop:")
    a(f"""
    v_mov_b32 v{vT0}, 1
    s_waitcnt vmcnt(6)
    s_mov_b64 exec, 1
    ds_add_rtn_u32 v{vT1}, v5, v{vT0} offset:{FLB+F_CNT}
    s_mov_b64 exec, -1
    """)
    for i in range(12):
        a(f"v_lshlrev_b32 v{F+2*i}, 16, v{R1+i}")
        a(f"v_and_b32 v{F+2*i+1}, 0xffff0000, v{R1+i}")
    lr = lab("noring")
    a(f"""
    s_waitcnt lgkmcnt(0)
    v_readfirstlane_b32 s{sK}, v{vT1}
    v_lshlrev_b32 v{vCml}, 3, v{vL}
    s_cmp_lt_u32 s{sK}, {NSLOT}
    s_cselect_b32 s{sT0}, 0, {NSLOT}
    s_cbranch_scc1 {lr}
    """)
    wait_flags3(F_RING, XT)
    a(f"""
    {lr}:
    s_sub_u32 s{sT0}, s{sK}, s{sT0}
    s_mul_i32 s{sT0}, s{sT0}, {SLOT}
    s_add_u32 s{sT0}, s{sT0}, {SLB}
    s_lshl_b32 s{sT1}, s{sK}, 9
    v_add_u32 v{vCw0}, s{sT0}, v{vXw0}
    v_add_u32 v{vCw1}, s{sT0}, v{vXw1}
    v_add_u32 v{vCr}, s{sT0}, v{vXr}
    v_add_u32 v{vCp}, s{sT0}, v{vLin}
    v_add_u32 v{vCml}, s{sT1}, v{vCml}
    s_mul_i32 s{sU}, s2, 18
    s_add_u32 s{sU}, s{sU}, s{sK}
    s_add_u32 s{sU}, s{sU}, {o['nd']}
    """)
    offsets()
    def fuse(R, p, T):
        r = R + 4 * p
        for i in range(4):
            a(f"v_dot2_f32_bf16 v{XT+2*i}, v{r+i}, s{sLO}, v{F+8*p+2*i}")
            a(f"v_dot2_f32_bf16 v{XT+2*i+1}, v{r+i}, s{sHI}, v{F+8*p+2*i+1}")
        for i in range(4):
            a(f"v_cvt_pk_bf16_f32 v{r+i}, v{XT+2*i}, v{XT+2*i+1}")
        va, off = ((vCw0, 0), (vCw0, XS + 64), (vCw1, 0))[p]
        a(f"ds_write_b128 v{va}, v[{r}:{r+3}] offset:{T*16*XS + off}")
    def stats_piece(R, p, s1, s2, first):
        r = R + 4 * p
        for i in range(4):
            c1 = "0" if (first and i == 0) else f"v{s1}"
            c2 = "0" if (first and i == 0) else f"v{s2}"
            a(f"v_dot2_f32_bf16 v{s1}, v{r+i}, s{sONE}, {c1}")
            a(f"v_dot2_f32_bf16 v{s2}, v{r+i}, v{r+i}, {c2}")
    def areads(AF, T):
        for kk in range(3):
            a(f"ds_read_b128 v[{AF+4*kk}:{AF+4*kk+3}], v{vCr} offset:{T*16*XS + kk*64}")
    def sreads(T):
        a(f"ds_read_b128 v[{C1+4*T}:{C1+4*T+3}], v{vStR} offset:{T*64}")
        a(f"ds_read_b128 v[{MN+4*T}:{MN+4*T+3}], v{vStR} offset:{128+T*64}")
    def smfma(AF, T):
        for kk in range(3):
            c = "0" if kk == 0 else f"v[{S+4*T}:{S+4*T+3}]"
            a(f"v_mfma_f32_16x16x32_bf16 v[{S+4*T}:{S+4*T+3}], v[{AF+4*kk}:{AF+4*kk+3}], v[{QK+4*kk}:{QK+4*kk+3}], {c}")
    def zcalc(T):
        for r in range(4):
            a(f"v_fma_f32 v{S+4*T+r}, -v{MN+4*T+r}, v{vRS}, v{S+4*T+r}")
        for r in (0, 2):
            a(f"v_pk_mul_f32 v[{S+4*T+r}:{S+4*T+r+1}], v[{S+4*T+r}:{S+4*T+r+1}], v[{C1+4*T+r}:{C1+4*T+r+1}]")
    def vwait(T, p):
        if T == 0:
            a(f"s_waitcnt vmcnt({5-p})")
        else:
            l = lab("w")
            a(f"""
            s_waitcnt vmcnt({8-p})
            s_cbranch_scc0 {l}
            s_waitcnt vmcnt({2-p})
            {l}:
            """)
    def tile(R, T, AF):
        vwait(T, 0)
        fuse(R, 0, T); stats_piece(R, 0, vA1, vA2, True)
        vwait(T, 1)
        fuse(R, 1, T); stats_piece(R, 1, vB1, vB2, True)
        a(f"""
        v_cndmask_b32 v{vT0}, v{vA1}, v{vB1}, s[{sME}:{sME+1}]
        v_cndmask_b32 v{vT1}, v{vA2}, v{vB2}, s[{sME}:{sME+1}]
        v_cndmask_b32 v{vA1}, v{vB1}, v{vA1}, s[{sME}:{sME+1}]
        v_cndmask_b32 v{vA2}, v{vB2}, v{vA2}, s[{sME}:{sME+1}]
        v_add_f32_dpp v{vA1}, v{vT0}, v{vA1} row_half_mirror row_mask:0xf bank_mask:0xf
        v_add_f32_dpp v{vA2}, v{vT1}, v{vA2} row_half_mirror row_mask:0xf bank_mask:0xf
        v_mov_b32 v{vT1}, 0x{f2u(1/96):08x}
        """)
        vwait(T, 2)
        if T == 1: stamp(4)
        fuse(R, 2, T)
        areads(AF, T)
        stats_piece(R, 2, vA1, vA2, False)
        l = lab("ni")
        a(f"s_cbranch_scc1 {l}")
        if T == 0:
            issue_f1(); issue_t(Ra, sOa)
        else:
            issue_t(Rb, sOb)
        a(f"""
        {l}:
        s_nop 1
        v_add_f32_dpp v{vA1}, v{vA1}, v{vA1} quad_perm:[1,0,3,2] row_mask:0xf bank_mask:0xf
        v_add_f32_dpp v{vA2}, v{vA2}, v{vA2} quad_perm:[1,0,3,2] row_mask:0xf bank_mask:0xf
        v_add_f32_dpp v{vA1}, v{vA1}, v{vA1} quad_perm:[2,3,0,1] row_mask:0xf bank_mask:0xf
        v_add_f32_dpp v{vA2}, v{vA2}, v{vA2} quad_perm:[2,3,0,1] row_mask:0xf bank_mask:0xf
        v_mul_f32 v{vA1}, v{vT1}, v{vA1}
        v_mul_f32 v{vT0}, v{vA1}, v{vA1}
        v_fma_f32 v{vA2}, v{vA2}, v{vT1}, -v{vT0}
        """)
        sd_mimic(a, vA2, vT0)
        a(f"""
        v_rcp_f32 v{vA2}, v{vA2}
        s_waitcnt lgkmcnt(0)
        v_mul_f32 v{vA2}, 0x{f2u(CONST):08x}, v{vA2}
        v_cndmask_b32 v{vA1}, v{vA2}, v{vA1}, s[{sMQ}:{sMQ+1}]
        ds_write_b32 v{vStW}, v{vA1} offset:{T*64}
        """)
        sreads(T)
        smfma(AF, T)
    a(f"s_cmp_ge_u32 s{sK}, {18 - o['nd']}")
    tile(Ra, 0, AFa)
    a("s_waitcnt lgkmcnt(0)")
    zcalc(0)
    a(f"""
    v_max_f32 v{vT2}, v{S}, v{S+1}
    v_max3_f32 v{vT2}, v{vT2}, v{S+2}, v{S+3}
    """)
    tile(Rb, 1, AFb)
    lq = lab("qk")
    a(f"""
    s_cmp_lg_u32 s{sIT}, 0
    s_cbranch_scc1 L_skip_first
    v_mul_u32_u24 v{vT1}, {XS}, v{vN}
    s_branch {lq}_in
    {lq}:
    s_sleep 1
    """)
    spin_guard()
    a(f"""
    {lq}_in:
    ds_read_b128 v[{XT}:{XT+3}], v{vT1} offset:{QKB+192}
    """)
    for kk in range(3):
        a(f"ds_read_b128 v[{QK+4*kk}:{QK+4*kk+3}], v{vXr} offset:{QKB + kk*64}")
    a(f"""
    s_waitcnt lgkmcnt(0)
    v_max_u32 v{vT0}, v{XT}, v{XT+1}
    v_max_u32 v{vT0}, v{vT0}, v{XT+2}
    v_cmp_eq_u32 vcc, -1, v{vT0}
    s_cbranch_vccnz {lq}
    v_add_f32 v{vRS}, v{XT}, v{XT+1}
    v_add_f32 v{vRS}, v{vRS}, v{XT+2}
    """)
    stamp(3)
    smfma(AFa, 0); smfma(AFb, 1)
    zcalc(0)
    a(f"""
    v_max_f32 v{vT2}, v{S}, v{S+1}
    v_max3_f32 v{vT2}, v{vT2}, v{S+2}, v{S+3}
    L_skip_first:
    s_waitcnt lgkmcnt(0)
    s_nop 4
    """)
    zcalc(1)
    a(f"""
    v_max3_f32 v{vT2}, v{vT2}, v{S+4}, v{S+5}
    v_max3_f32 v{vT2}, v{vT2}, v{S+6}, v{S+7}
    v_mov_b32 v{vT0}, v{vT2}
    v_permlane32_swap_b32 v{vT2}, v{vT0}
    v_max_f32 v{vT2}, v{vT2}, v{vT0}
    v_mov_b32 v{vT0}, v{vT2}
    v_permlane16_swap_b32 v{vT2}, v{vT0}
    v_max_f32 v{vT2}, v{vT2}, v{vT0}
    """)
    for i in range(0, 8, 2):
        a(f"v_pk_add_f32 v[{S+i}:{S+i+1}], v[{S+i}:{S+i+1}], v[{vT2}:{vT3}] op_sel_hi:[1,0] neg_lo:[0,1] neg_hi:[0,1]")
    for i in range(8): a(f"v_exp_f32 v{S+i}, v{S+i}")
    for i in range(0, 8, 2):
        a(f"v_pk_mul_f32 v[{C1+i}:{C1+i+1}], v[{S+i}:{S+i+1}], v[{C1+i}:{C1+i+1}]")
    for i in range(4): a(f"v_cvt_pk_bf16_f32 v{XT+i}, v{C1+2*i}, v{C1+2*i+1}")
    a(f"""
    ds_write_b128 v{vCp}, v[{XT}:{XT+3}] offset:{32*XS}
    v_pk_add_f32 v[{S}:{S+1}], v[{S}:{S+1}], v[{S+2}:{S+3}]
    v_pk_add_f32 v[{S+4}:{S+5}], v[{S+4}:{S+5}], v[{S+6}:{S+7}]
    v_min_u32 v{vT2}, -2, v{vT2}
    v_pk_add_f32 v[{S}:{S+1}], v[{S}:{S+1}], v[{S+4}:{S+5}]
    v_add_f32 v{vT3}, v{S}, v{S+1}
    ds_write_b64 v{vCml}, v[{vT2}:{vT3}] offset:{MLB}
    s_add_u32 s{sIT}, s{sIT}, 1
    """)
    if stamps:
        a(f"s_cmp_eq_u32 s{sIT}, 2\ns_cbranch_scc0 L_nost")
        stamp(8)
        a("L_nost:")
    a(f"""
    s_cmp_lt_u32 s{sK}, {18 - o['nd']}
    s_cbranch_scc1 L_dloop
    """)
    stamp(5)
    a(f"""
    s_cmp_ge_u32 s{sC}, 8
    s_cbranch_scc1 L_fin
    L_cons:
    s_cmp_ge_u32 s2, 96
    s_cbranch_scc1 L_fin
    s_setprio 0
    """)
    srd(a, sOUT, 30, 3072)
    G0, G1 = 28, 32
    O = 36
    a(f"""
    s_mul_i32 s{sTAG}, s{sEP}, 0x9E3779B1
    s_add_u32 s{sTAG}, s{sTAG}, 0x7F4A7C15
    s_lshl_b32 s{sT0}, s2, 14
    s_lshl_b32 s{sT1}, s{sC}, 11
    s_add_u32 s{sOa}, s{sT0}, s{sT1}
    s_lshl_b32 s{sOb}, s2, 5
    v_lshlrev_b32 v10, 1, v{vN}
    buffer_load_ushort v11, v10, s[{sQ}:{sQ+3}], s{sOb} offen
    """)
    if o["pretouch"]:
        a(f"buffer_load_dword v12, v5, s[{sWS}:{sWS+3}], s{sOa} offen sc1")
        a(f"buffer_load_ushort v13, v10, s[{sOUT}:{sOUT+3}], s{sOb} offen")
    wait_flags3(F_ACC, 40, sleep=2)
    lp = lab("poll")
    a(f"{lp}:")
    spin_guard()
    a(f"""
    buffer_load_dwordx4 v[{G0}:{G0+3}], v{vLin}, s[{sWS}:{sWS+3}], s{sOa} offen sc1
    buffer_load_dwordx4 v[{G1}:{G1+3}], v{vLin}, s[{sWS}:{sWS+3}], s{sOa} offen offset:1024 sc1
    s_waitcnt vmcnt(0)
    v_bitop3_b32 v{vT0}, v{G0}, v{G0+1}, v{G0+2} bitop3:0x96
    v_bitop3_b32 v{vT1}, v{G1}, v{G1+1}, v{G1+2} bitop3:0x96
    v_bitop3_b32 v{vT0}, v{vT0}, v{G0+3}, s{sTAG} bitop3:0x96
    v_bitop3_b32 v{vT1}, v{vT1}, v{G1+3}, s{sTAG} bitop3:0x96
    v_xor_b32_dpp v{vT2}, v{G0+2}, v{G0+2} quad_perm:[1,2,3,0] row_mask:0xf bank_mask:0xf
    v_xor_b32_dpp v{vT3}, v{G1+2}, v{G1+2} quad_perm:[1,2,3,0] row_mask:0xf bank_mask:0xf
    v_or3_b32 v{vT0}, v{vT0}, v{vT1}, v{vT2}
    v_or_b32 v{vT0}, v{vT0}, v{vT3}
    v_cmp_ne_u32 vcc, 0, v{vT0}
    s_cbranch_vccnz {lp}
    """)
    stamp(1)
    a(f"""
    v_max_f32 v12, v{G0+2}, v{G1+2}
    v_lshlrev_b32 v16, 16, v{G0}
    v_and_b32 v17, 0xffff0000, v{G0}
    v_max_f32_dpp v12, v12, v12 row_ror:4 row_mask:0xf bank_mask:0xf
    v_lshlrev_b32 v18, 16, v{G0+1}
    v_and_b32 v19, 0xffff0000, v{G0+1}
    v_max_f32_dpp v12, v12, v12 row_ror:8 row_mask:0xf bank_mask:0xf
    v_lshlrev_b32 v20, 16, v{G1}
    v_mov_b32 v13, v12
    v_and_b32 v21, 0xffff0000, v{G1}
    v_lshlrev_b32 v22, 16, v{G1+1}
    v_permlane32_swap_b32 v12, v13
    v_max_f32 v12, v12, v13
    v_mov_b32 v13, v12
    v_and_b32 v23, 0xffff0000, v{G1+1}
    v_permlane16_swap_b32 v12, v13
    v_max_f32 v12, v12, v13
    v_sub_f32 v14, v{G0+2}, v12
    v_sub_f32 v15, v{G1+2}, v12
    v_exp_f32 v14, v14
    v_exp_f32 v15, v15
    """)
    for r in range(4): a(f"v_mul_f32 v{O+r}, v14, v{16+r}")
    for r in range(4): a(f"v_fmac_f32 v{O+r}, v15, v{20+r}")
    a(f"v_add_f32 v13, v14, v15")
    regs = [O, O+1, O+2, O+3, 13]
    for rr in (4, 8):
        for r in regs: a(f"v_add_f32_dpp v{r}, v{r}, v{r} row_ror:{rr} row_mask:0xf bank_mask:0xf")
    for sw in ("32", "16"):
        for i, r in enumerate(regs): a(f"v_mov_b32 v{16+i}, v{r}")
        for i, r in enumerate(regs): a(f"v_permlane{sw}_swap_b32 v{r}, v{16+i}")
        for i, r in enumerate(regs): a(f"v_add_f32 v{r}, v{r}, v{16+i}")
    a(f"""
    s_lshl_b32 s{sT0}, s{sC}, 6
    v_add_u32 v{vT0}, s{sT0}, v{vLin}
    s_lshl_b32 s{sT0}, s{sC}, 3
    v_mov_b32 v{vT1}, s{sT0}
    v_mov_b32 v{vT2}, 1
    s_mov_b64 exec, 15
    ds_write_b128 v{vT0}, v[{O}:{O+3}] offset:{CNB}
    s_mov_b64 exec, 1
    ds_write_b64 v{vT1}, v[12:13] offset:{CNB+512}
    ds_add_rtn_u32 v{vT3}, v5, v{vT2} offset:{FLB+F_CC}
    s_mov_b64 exec, -1
    v_lshlrev_b32 v{vT0}, 2, v{vL}
    v_lshlrev_b32 v{vT1}, 3, v{vG}
    ds_read_b32 v16, v{vT0} offset:{CNB}
    ds_read_b32 v17, v{vT0} offset:{CNB+256}
    ds_read_b64 v[18:19], v{vT1} offset:{CNB+512}
    ds_read_b64 v[20:21], v{vT1} offset:{CNB+512+32}
    s_waitcnt lgkmcnt(0)
    v_readfirstlane_b32 s{sT0}, v{vT3}
    s_cmp_lg_u32 s{sT0}, 7
    s_cbranch_scc1 L_fin
    v_max_f32 v12, v18, v20
    v_mov_b32 v13, v12
    v_permlane32_swap_b32 v12, v13
    v_max_f32 v12, v12, v13
    v_mov_b32 v13, v12
    v_permlane16_swap_b32 v12, v13
    v_max_f32 v12, v12, v13
    v_sub_f32 v18, v18, v12
    v_sub_f32 v20, v20, v12
    v_exp_f32 v18, v18
    v_exp_f32 v20, v20
    v_mul_f32 v16, v16, v18
    v_mul_f32 v19, v19, v18
    v_fmac_f32 v16, v17, v20
    v_fmac_f32 v19, v21, v20
    v_mov_b32 v13, v16
    v_mov_b32 v14, v19
    v_permlane32_swap_b32 v16, v13
    v_permlane32_swap_b32 v19, v14
    v_add_f32 v16, v16, v13
    v_add_f32 v19, v19, v14
    v_mov_b32 v13, v16
    v_mov_b32 v14, v19
    v_permlane16_swap_b32 v16, v13
    v_permlane16_swap_b32 v19, v14
    v_add_f32 v19, v19, v14
    v_add_f32 v16, v16, v13
    v_rcp_f32 v19, v19
    v_lshlrev_b32 v11, 16, v11
    v_fma_f32 v16, v16, v19, v11
    v_cvt_pk_bf16_f32 v16, v16, v16
    s_mov_b64 exec, 0xffff
    buffer_store_short v16, v10, s[{sOUT}:{sOUT+3}], s{sOb} offen
    s_cmp_lg_u32 s2, 0
    s_cbranch_scc1 L_fin
    s_add_u32 s{sEP}, s{sEP}, 1
    v_mov_b32 v{vT0}, s{sEP}
    v_mov_b32 v{vT1}, {EPOCH_OFF}
    s_mov_b64 exec, 1
    buffer_store_dword v{vT0}, v{vT1}, s[{sWS}:{sWS+3}], 0 offen
    s_branch L_fin
    """)
    hAq, hAc, hTr, hAw, hM, hLa, hOne, hFl = 10, 11, 12, 13, 14, 15, 16, 17
    hX, hMl = 18, 19
    ACC = 20; D = 28; XF = 36; PF = 44; ML = 48; hSt = 50; hDum = 51; RQ = 52; WVO = 64; FA = 88; DW = 112
    NVH = 160
    a(f"""
    L_helper:
    s_sub_u32 s{sD}, s{sD}, 12
    v_mul_u32_u24 v{vT0}, {XS}, v{vN}
    ds_write_b128 v{vT0}, v[10:13] offset:{QKB+192}
    v_and_b32 v{vT0}, 31, v{vL}
    v_lshlrev_b32 v{vT0}, 2, v{vT0}
    ds_write_b32 v{vT0}, v5 offset:{FLB}
    """)
    if o["prefetch"]:
        a(f"""
        s_getpc_b64 s[6:7]
        L_pc:
        s_sub_u32 s6, s6, L_pc-{NAME}_kernel
        s_subb_u32 s7, s7, 0
        v_lshlrev_b32 v{vT0}, 6, v{vL}
        s_lshl_b32 s{sT0}, s{sD}, 12
        v_add_u32 v{vT0}, s{sT0}, v{vT0}
        v_min_u32 v{vT0}, CODE_LEN, v{vT0}
        global_load_dword v{hDum}, v{vT0}, s[6:7]
        """)
    def stageA(base, sWA=sWA):
        a(f"s_lshl_b32 s{sT0}, s{sD}, 6")
        for j in range(6):
            a(f"s_add_u32 m0, s{sT2}, {base + 1024*j}")
            if j: a(f"s_add_u32 s{sT0}, s{sT0}, 3072")
            a(f"buffer_load_dwordx4 v{hAc}, s[{sWA}:{sWA+3}], s{sT0} offen lds")
    def stageB(base, sWB=sWB):
        a(f"s_add_u32 m0, s{sT2}, {base + 18432}")
        a(f"s_add_u32 s{sT0}, s{sT2}, 4096")
        for j in range(4):
            a(f"buffer_load_dwordx4 v{vLin}, s[{sWB}:{sWB+3}], s{sT2} offen offset:{1024*j} lds")
        a(f"s_add_u32 m0, s{sT2}, {base + 18432 + 4096}")
        for j in range(2):
            a(f"buffer_load_dwordx4 v{vLin}, s[{sWB}:{sWB+3}], s{sT0} offen offset:{1024*j} lds")
    a(f"""
    v_mul_u32_u24 v{hAq}, 192, v{vN}
    v_lshl_add_u32 v{hAq}, v{vG}, 4, v{hAq}
    v_lshrrev_b32 v{vT0}, 2, v{vL}
    v_and_b32 v{vT1}, 3, v{vL}
    v_mul_u32_u24 v{hAc}, 192, v{vT0}
    v_lshl_add_u32 v{hAc}, v{vT1}, 4, v{hAc}
    s_mul_i32 s{sT2}, s{sD}, 6144
    s_add_u32 s{sC}, s{sD}, {o['nd']}
    s_waitcnt lgkmcnt(0)
    """)
    srd(a, sQ, 16, 3072)
    for kk in range(3):
        a(f"buffer_load_dwordx4 v[{RQ+4*kk}:{RQ+4*kk+3}], v{hAq}, s[{sQ}:{sQ+3}], 0 offen offset:{64*kk}")
    srd(a, sWA, 22, 18432)
    stageA(STA)
    a("s_barrier")
    stamp(1)
    srd(a, sWB, 24, 18432)
    srd(a, sWS, 34, 0x10000000)
    a(f"""
    s_add_u32 s6, s34, {EPOCH_OFF}
    s_addc_u32 s7, s35, 0
    s_load_dword s{sEP}, s[6:7], 0
    v_lshrrev_b32 v{vT0}, 2, v{vN}
    v_lshl_add_u32 v{vT0}, v{vG}, 3, v{vT0}
    v_lshlrev_b32 v{hTr}, 6, v{vT0}
    v_lshl_add_u32 v{hTr}, v{vT1}, 3, v{hTr}
    v_add_u32 v{hTr}, s{sT2}, v{hTr}
    v_add_u32 v{hX}, {STA-STG}, v{hTr}
    v_mov_b32 v{hOne}, 1
    s_lshl_b32 s{sT0}, s{sD}, 2
    v_mov_b32 v{hFl}, s{sT0}
    s_waitcnt vmcnt(6)
    """)
    stageB(STA)
    stamp(2)
    vS1, vS2 = vT2, vT3
    for i in range(12):
        c1 = "0" if i == 0 else f"v{vS1}"
        c2 = "0" if i == 0 else f"v{vS2}"
        a(f"v_dot2_f32_bf16 v{vS1}, v{RQ+i}, s{sONE}, {c1}")
        a(f"v_dot2_f32_bf16 v{vS2}, v{RQ+i}, v{RQ+i}, {c2}")
    crossg_sum(a, vS1, vT0)
    crossg_sum(a, vS2, vT0)
    a(f"""
    v_mul_f32 v{vS1}, 0x{f2u(1/96):08x}, v{vS1}
    v_mul_f32 v{vT0}, v{vS1}, v{vS1}
    v_mov_b32 v{vT1}, 0x{f2u(1/96):08x}
    v_fma_f32 v{vS2}, v{vS2}, v{vT1}, -v{vT0}
    """)
    sd_mimic(a, vS2, vT0)
    a(f"""
    v_rcp_f32 v{vS2}, v{vS2}
    v_sub_f32 v{vS1}, 0, v{vS1}
    """)
    for i in range(12):
        a(f"v_dot2_f32_bf16 v{DW+2*i}, v{RQ+i}, s{sLO}, v{vS1}")
        a(f"v_dot2_f32_bf16 v{DW+2*i+1}, v{RQ+i}, s{sHI}, v{vS1}")
    for i in range(12):
        a(f"v_pk_mul_f32 v[{DW+2*i}:{DW+2*i+1}], v[{DW+2*i}:{DW+2*i+1}], v[{vT2}:{vT3}] op_sel:[0,1] op_sel_hi:[1,1]")
    for i in range(12):
        a(f"v_cvt_pk_bf16_f32 v{RQ+i}, v{DW+2*i}, v{DW+2*i+1}")
    def trfrags(dst, va):
        for t in range(2):
            for kk in range(3):
                for h in range(2):
                    r = dst + 12 * t + 4 * kk + 2 * h
                    a(f"ds_read_b64_tr_b16 v[{r}:{r+1}], v{va} offset:{STG + kk*2048 + h*256 + t*32}")
    def setflag(off):
        a(f"""
        s_mov_b64 exec, 1
        ds_write_b32 v{hFl}, v{hOne} offset:{FLB+off}
        s_mov_b64 exec, -1
        """)
    def exchange(src, flag):
        for i in range(4): a(f"v_cvt_pk_bf16_f32 v{PF+i}, v{src+2*i}, v{src+2*i+1}")
        a(f"ds_write_b128 v{hAw}, v[{PF}:{PF+3}] offset:{EXB}")
        a(f"ds_write_b32 v{hFl}, v{hOne} offset:{FLB+flag}")
    def gather(flag):
        l = lab("ex")
        a(f"s_branch {l}_in\n{l}:")
        spin_guard()
        a(f"{l}_in:")
        a(f"ds_read_b128 v[{XF}:{XF+3}], v5 offset:{FLB+flag}")
        for kk in range(3):
            a(f"ds_read_b128 v[{RQ+4*kk}:{RQ+4*kk+3}], v{vLin} offset:{EXB + 1024*kk}")
        a(f"""
        s_waitcnt lgkmcnt(3)
        v_min_u32 v{XF}, v{XF}, v{XF+1}
        v_min_u32 v{XF}, v{XF}, v{XF+2}
        v_cmp_eq_u32 vcc, 0, v{XF}
        s_cbranch_vccnz {l}
        s_waitcnt lgkmcnt(0)
        """)
    def mm2(Areg, Breg, dst):
        for kk in range(3):
            for t in range(2):
                c = "0" if kk == 0 else f"v[{dst+4*t}:{dst+4*t+3}]"
                a(f"v_mfma_f32_16x16x32_bf16 v[{dst+4*t}:{dst+4*t+3}], v[{Areg+12*t+4*kk}:{Areg+12*t+4*kk+3}], v[{Breg+4*kk}:{Breg+4*kk+3}], {c}")
    a(f"""
    s_lshl_b32 s{sT0}, s{sD}, 10
    v_add_u32 v{hAw}, s{sT0}, v{vLin}
    s_waitcnt vmcnt(6) lgkmcnt(0)
    """)
    trfrags(FA, hX)
    a("s_waitcnt lgkmcnt(0)")
    mm2(FA, RQ, D)
    exchange(D, F_Q)
    a(f"""
    v_mul_u32_u24 v{vT0}, 192, v{vN}
    v_lshl_add_u32 v{vT0}, v{vG}, 3, v{vT0}
    s_add_u32 s{sT0}, s{sT2}, {STA + 18432}
    v_add_u32 v{vT0}, s{sT0}, v{vT0}
    """)
    if o["wearly"]:
        srd(a, sF0, 28, 18432); srd(a, sF1, 26, 18432)
        stageB(STG, sF1); stageA(STG, sF0)
    gather(F_Q)
    a(f"s_waitcnt vmcnt({12 if o['wearly'] else 0})")
    for t in range(2):
        for kk in range(3):
            for h in range(2):
                r = FA + 12 * t + 4 * kk + 2 * h
                a(f"ds_read_b64 v[{r}:{r+1}], v{vT0} offset:{t*3072 + kk*64 + h*32}")
    a(f"""
    v_mul_u32_u24 v{vT0}, {XS}, v{vN}
    v_lshl_add_u32 v{vT1}, v{vG}, 3, v{vT0}
    s_lshl_b32 s{sT0}, s{sD}, 6
    v_add_u32 v{vT1}, s{sT0}, v{vT1}
    v_add_u32 v{vT0}, v{vT0}, v{hFl}
    s_waitcnt lgkmcnt(0)
    """)
    mm2(FA, RQ, D)
    srd(a, sWA, 28, 18432); srd(a, sWB, 26, 18432)
    for i in range(4): a(f"v_cvt_pk_bf16_f32 v{PF+i}, v{D+2*i}, v{D+2*i+1}")
    a(f"""
    ds_write_b64 v{vT1}, v[{PF}:{PF+1}] offset:{QKB}
    ds_write_b64 v{vT1}, v[{PF+2}:{PF+3}] offset:{QKB+32}
    v_dot2_f32_bf16 v{vT2}, v{PF}, s{sONE}, 0
    v_dot2_f32_bf16 v{vT2}, v{PF+1}, s{sONE}, v{vT2}
    v_dot2_f32_bf16 v{vT2}, v{PF+2}, s{sONE}, v{vT2}
    v_dot2_f32_bf16 v{vT2}, v{PF+3}, s{sONE}, v{vT2}
    """)
    crossg_sum(a, vT2, vT3)
    a(f"""
    v_min_u32 v{vT2}, -2, v{vT2}
    ds_write_b32 v{vT0}, v{vT2} offset:{QKB+192}
    s_setprio {o['wprio']}
    """)
    stamp(3)
    if not o['wearly']:
        stageB(STG); stageA(STG)
    a(f"""
    s_setprio 3
    s_mul_i32 s{sTAG}, s{sEP}, 0x9E3779B1
    s_add_u32 s{sTAG}, s{sTAG}, 0x7F4A7C15
    s_and_b32 s{sT0}, s2, 7
    s_lshl_b32 s{sT0}, s{sT0}, 5
    s_lshr_b32 s{sT1}, s2, 3
    s_add_u32 s{sT0}, s{sT0}, s{sT1}
    s_lshl_b32 s{sT0}, s{sT0}, 6
    s_lshl_b32 s{sT1}, s{sD}, 15
    s_add_u32 s{sOb}, s{sT0}, s{sT1}
    s_add_u32 s{sO1}, s{sOb}, 16384
    v_mul_u32_u24 v{hSt}, {6*16384}, v{vN}
    v_lshl_add_u32 v{hSt}, v{vG}, 4, v{hSt}
    """)
    if o["pretouch"]:
        a(f"buffer_load_dword v{hDum}, v{hSt}, s[{sWS}:{sWS+3}], s{sOb} offen sc1")
        a(f"buffer_load_dword v{hDum}, v{hSt}, s[{sWS}:{sWS+3}], s{sO1} offen sc1")
    stamp(8)
    a(f"""
    v_lshrrev_b32 v{vT0}, 2, v{vN}
    v_lshl_add_u32 v{vT0}, v{vG}, 2, v{vT0}
    v_mul_u32_u24 v{hX}, {XS}, v{vT0}
    v_and_b32 v{vT1}, 3, v{vL}
    v_lshl_add_u32 v{hX}, v{vT1}, 3, v{hX}
    s_lshl_b32 s{sT0}, s{sD}, 6
    v_add_u32 v{hX}, s{sT0}, v{hX}
    v_lshlrev_b32 v{hMl}, 3, v{vL}
    v_mov_b32 v{hM}, 0xf149f2ca
    v_mov_b32 v{hLa}, 0
    """)
    for i in range(8): a(f"v_mov_b32 v{ACC+i}, 0")
    a(f"""
    s_mov_b32 s{sK}, 0
    s_mov_b32 s{sOa}, {SLB}
    L_hloop:
    v_add_u32 v{vT2}, s{sOa}, v{hX}
    v_add_u32 v{vT3}, s{sOa}, v{vLin}
    s_branch L_hpoll_in
    L_hpoll:
    s_cmp_eq_u32 s{sK}, 17
    s_cbranch_scc1 L_hpoll_ns
    s_sleep 2
    L_hpoll_ns:
    """)
    spin_guard()
    a(f"""
    L_hpoll_in:
    ds_read_b64 v[{ML}:{ML+1}], v{hMl} offset:{MLB}
    ds_read_b128 v[{PF}:{PF+3}], v{vT3} offset:{32*XS}
    """)
    for t in range(2):
        for h in range(2):
            r = XF + 4 * t + 2 * h
            a(f"ds_read_b64_tr_b16 v[{r}:{r+1}], v{vT2} offset:{t*32 + h*16*XS}")
    a(f"""
    s_waitcnt lgkmcnt(5)
    v_cmp_eq_u32 vcc, -1, v{ML}
    s_cbranch_vccnz L_hpoll
    v_max_f32 v{vT0}, v{hM}, v{ML}
    v_sub_f32 v{hM}, v{hM}, v{vT0}
    v_sub_f32 v{ML}, v{ML}, v{vT0}
    s_waitcnt lgkmcnt(2)
    v_mfma_f32_16x16x32_bf16 v[{D}:{D+3}], v[{XF}:{XF+3}], v[{PF}:{PF+3}], 0
    v_exp_f32 v{vT2}, v{hM}
    s_waitcnt lgkmcnt(0)
    v_mfma_f32_16x16x32_bf16 v[{D+4}:{D+7}], v[{XF+4}:{XF+7}], v[{PF}:{PF+3}], 0
    v_exp_f32 v{ML}, v{ML}
    v_mov_b32 v{hM}, v{vT0}
    """)
    for i in range(0, 8, 2):
        a(f"v_pk_mul_f32 v[{ACC+i}:{ACC+i+1}], v[{ACC+i}:{ACC+i+1}], v[{vT2}:{vT3}] op_sel_hi:[1,0]")
    a(f"""
    v_mul_f32 v{hLa}, v{hLa}, v{vT2}
    v_add_u32 v{hMl}, 512, v{hMl}
    """)
    for i in range(0, 8, 2):
        a(f"v_pk_fma_f32 v[{ACC+i}:{ACC+i+1}], v[{D+i}:{D+i+1}], v[{ML}:{ML+1}], v[{ACC+i}:{ACC+i+1}] op_sel_hi:[1,0,1]")
    a(f"""
    v_fmac_f32 v{hLa}, v{ML}, v{ML+1}
    s_cmp_eq_u32 s{sK}, 17
    s_cbranch_scc1 L_hfin
    s_add_u32 s{sOa}, s{sOa}, {SLOT}
    s_cmp_eq_u32 s{sK}, {NSLOT-1}
    s_cselect_b32 s{sOa}, {SLB}, s{sOa}
    s_add_u32 s{sK}, s{sK}, 1
    s_cmp_lg_u32 s{sK}, {KW+1}
    s_cbranch_scc1 L_hloop
    ds_write_b32 v{hFl}, v{hOne} offset:{FLB+F_RING}
    s_waitcnt vmcnt(0)
    ds_write_b32 v{hFl}, v{hOne} offset:{FLB+F_WV}
    """)
    trfrags(WVO, hTr)
    wait_flags3(F_WV, XF)
    a(f"s_setprio {o['wvoprio']}")
    stamp(2)
    for half in range(3):
        for cti in range(2):
            ct = 2 * half + cti
            for kk in range(3):
                r = FA + 12 * cti + 4 * kk
                a(f"ds_read_b128 v[{r}:{r+3}], v{hAq} offset:{STG + 18432 + ct*3072 + kk*64}")
        a("s_waitcnt lgkmcnt(0)")
        for kk in range(3):
            for cti in range(2):
                ct = 2 * half + cti
                r = FA + 12 * cti + 4 * kk
                for t in range(2):
                    d = DW + 24 * t + 4 * ct
                    c = "0" if kk == 0 else f"v[{d}:{d+3}]"
                    a(f"v_mfma_f32_16x16x32_bf16 v[{d}:{d+3}], v[{r}:{r+3}], v[{WVO+12*t+4*kk}:{WVO+12*t+4*kk+3}], {c}")
    for t in range(2):
        b = DW + 24 * t
        a(f"v_pk_add_f32 v[{vT2}:{vT3}], v[{b}:{b+1}], v[{b+2}:{b+3}]")
        for i in range(4, 24, 2): a(f"v_pk_add_f32 v[{vT2}:{vT3}], v[{vT2}:{vT3}], v[{b+i}:{b+i+1}]")
        a(f"v_add_f32 v{vT2}, v{vT2}, v{vT3}")
        crossg_sum(a, vT2, vT0)
        a(f"v_mul_f32 v{vT2}, 0x{f2u(-1/96):08x}, v{vT2}")
        for i in range(0, 24, 2): a(f"v_pk_add_f32 v[{b+i}:{b+i+1}], v[{b+i}:{b+i+1}], v[{vT2}:{vT3}] op_sel_hi:[1,0]")
        for i in range(12): a(f"v_cvt_pk_bf16_f32 v{WVO+12*t+i}, v{b+2*i}, v{b+2*i+1}")
    stamp(4)
    a(f"""
    s_setprio 3
    s_branch L_hloop
    L_hfin:
    """)
    stamp(5)
    exchange(ACC, F_ACC)
    crossg_sum(a, hLa, vT0)
    a(f"""
    v_log_f32 v{vT2}, v{hLa}
    v_mul_f32 v{hLa}, 0x{f2u(CONST):08x}, v{hLa}
    v_rcp_f32 v{hLa}, v{hLa}
    v_add_f32 v{ACC+2}, v{hM}, v{vT2}
    v_add_f32 v{ACC+6}, v{hM}, v{vT2}
    v_xor_b32 v{vT3}, s{sTAG}, v{ACC+2}
    """)
    gather(F_ACC)
    mm2(WVO, RQ, D)
    for t in range(2):
        for i in (0, 2):
            a(f"v_pk_mul_f32 v[{D+4*t+i}:{D+4*t+i+1}], v[{D+4*t+i}:{D+4*t+i+1}], v[{hM}:{hLa}] op_sel:[0,1] op_sel_hi:[1,1]")
        a(f"""
        v_cvt_pk_bf16_f32 v{ACC+4*t}, v{D+4*t}, v{D+4*t+1}
        v_cvt_pk_bf16_f32 v{ACC+4*t+1}, v{D+4*t+2}, v{D+4*t+3}
        v_bitop3_b32 v{ACC+4*t+3}, v{ACC+4*t}, v{ACC+4*t+1}, v{vT3} bitop3:0x96
        buffer_store_dwordx4 v[{ACC+4*t}:{ACC+4*t+3}], v{hSt}, s[{sWS}:{sWS+3}], s{sOb if t == 0 else sO1} offen sc1
        """)
    stamp(6)
    a(f"""
    s_cmp_lt_u32 s{sC}, 8
    s_cbranch_scc1 L_cons
    L_fin:
    """)
    if stamps:
        a("s_waitcnt vmcnt(0)")
        stamp(7)
        a(f"""
        s_mul_i32 s{sT0}, s2, {NW}
        s_add_u32 s{sT0}, s{sT0}, s{sW}
        s_mul_i32 s{sT0}, s{sT0}, {8*nstamp}
        s_add_u32 s{sT0}, s{sT0}, 0x8000000
        s_sleep 127
        s_sleep 127
        s_sleep 127
        s_mov_b64 exec, 1
        """)
        for i in range(nstamp):
            a(f"""
            v_mov_b32 v2, s{SST+2*i}
            v_mov_b32 v3, s{SST+1+2*i}
            buffer_store_dwordx2 v[2:3], v5, s[{sWS}:{sWS+3}], s{sT0} offen offset:{8*i}
            """)
    a("""
    L_end:
    s_endpgm
    """)
    return a.finish(), max(NVD, NVH), 102, NW

def build(stamps=False, opts=None):
    m, mv, ms, NW = gen(stamps, opts=opts)
    k1 = NAME + "_kernel"
    out = HDR
    out += f"; @launch grid=(256,1,1) block=({64*NW},1,1) lds={LDS_TOTAL}\n"
    out += '.amdgcn_target "amdgcn-amd-amdhsa--gfx950"\n.text\n'
    out += f".set CODE_LEN, L_end - {k1}\n"
    out += f".globl {k1}\n.p2align 8\n.type {k1},@function\n{k1}:\n{m}"
    out += '.section .rodata,"a"\n'
    out += kd(k1, mv, ms)
    return out

if __name__ == "__main__":
    path = sys.argv[1] if len(sys.argv) > 1 else "cdna_kernels/%s.s" % NAME
    opts = eval("dict(%s)" % (sys.argv[3] if len(sys.argv) > 3 else ""))
    open(path, "w").write(build(len(sys.argv) > 2 and sys.argv[2] == "stamps", opts))
    print("LDS", LDS_TOTAL)
```

```python
import sys, struct
from asmgen import Asm
from gen1 import srd, kd, NAME, HDR, f2u, crossg_sum, sd_mimic

XS = 208
QKB = 0
EXB = QKB + 16 * XS
FLB = EXB + 3072
MLB = FLB + 128
STB = MLB + 18 * 512
CNB = STB + 9 * 256
STG = CNB + 1024
SLB = STG + 36864
SLOT = 32 * XS + 1024
NSLOT = 13
STA = SLB + 9 * SLOT
LDS_TOTAL = STA + 36864
F_Q, F_ACC, F_RING, F_WV, F_CNT, F_CC = 0, 16, 32, 48, 64, 68
CONST = 96 ** -0.5 * 1.4426950408889634
EPOCH_OFF = 0x200000
SPIN_MAX = 1 << 22
ROLES = {0: 12, 1: 13, 2: 14, 3: 0, 4: 1, 5: 2, 6: 3, 7: 4, 8: 5, 9: 6, 10: 7, 11: 8}

def gen(stamps=False, nstamp=9, opts=None):
    o = dict(prefetch=True, f0flags="nt", f1flags="", KW=6, pretouch=True, wprio=1, roles=ROLES, wearly=False, wvoprio=3, nd=6, touch=True)
    o.update(opts or {})
    KW = o["KW"]
    NW = o["nd"] + 3
    a = Asm()
    uid = [0]
    def lab(p):
        uid[0] += 1
        return f"L_{p}{uid[0]}"
    SST = 84
    def stamp(i):
        if stamps:
            a(f"s_memrealtime s[{SST+2*i}:{SST+1+2*i}]")
            a("s_waitcnt lgkmcnt(0)")
            if i == 0:
                for j in range(1, nstamp): a(f"s_mov_b64 s[{SST+2*j}:{SST+1+2*j}], s[{SST}:{SST+1}]")
    sW = 3
    sF0, sF1, sQ, sWA, sWB, sWS, sOUT = 36, 40, 44, 48, 52, 56, 60
    sLO, sHI, sONE = 64, 65, 66
    sOa, sOb, sO1, sT0, sT1, sT2, sU = 67, 68, 69, 70, 71, 72, 73
    sME, sMQ = 74, 76
    sEP, sTAG, sIT, sK, sSPIN, sC = 78, 79, 80, 81, 82, 83
    sD = 4
    vL, vN, vG, vLin = 1, 2, 3, 4
    vT0, vT1, vT2, vT3 = 6, 7, 8, 9

    def spin_guard():
        a(f"""
        s_add_u32 s{sSPIN}, s{sSPIN}, 1
        s_cmp_gt_u32 s{sSPIN}, {SPIN_MAX}
        s_cbranch_scc1 L_end
        """)
    def wait_flags3(off, vq, sleep=0):
        l = lab("wf")
        a(f"s_branch {l}_in\n{l}:")
        if sleep: a(f"s_sleep {sleep}")
        spin_guard()
        a(f"""
        {l}_in:
        ds_read_b128 v[{vq}:{vq+3}], v5 offset:{FLB+off}
        s_waitcnt lgkmcnt(0)
        v_min_u32 v{vq}, v{vq}, v{vq+1}
        v_min_u32 v{vq}, v{vq}, v{vq+2}
        v_cmp_eq_u32 vcc, 0, v{vq}
        s_cbranch_vccnz {l}
        """)
    tab = sum(v << (4 * k) for k, v in o["roles"].items())
    stamp(0)
    a(f"""
    s_cmp_ge_u32 s2, 256
    s_cbranch_scc1 L_end
    s_load_dwordx16 s[16:31], s[0:1], 0
    s_load_dwordx4 s[32:35], s[0:1], 64
    s_setprio 3
    """)
    if o["prefetch"]:
        a(f"""
        s_getpc_b64 s[6:7]
        v_lshlrev_b32 v6, 6, v0
        v_min_u32 v6, CODE_LEN, v6
        v_cmp_gt_u32 vcc, 192, v0
        s_and_saveexec_b64 s[8:9], vcc
        s_cbranch_execz L_nopf
        global_load_dword v51, v6, s[6:7]
        L_nopf:
        s_mov_b64 exec, s[8:9]
        """)
    a(f"""
    v_and_b32 v{vL}, 63, v0
    v_lshrrev_b32 v{vT0}, 6, v0
    v_and_b32 v{vN}, 15, v{vL}
    v_readfirstlane_b32 s{sW}, v{vT0}
    v_lshrrev_b32 v{vG}, 4, v{vL}
    v_lshlrev_b32 v{vLin}, 4, v{vL}
    v_mov_b32 v5, 0
    s_mov_b32 s{sSPIN}, 0
    s_mov_b32 s{sLO}, 0x00003f80
    s_mov_b32 s{sHI}, 0x3f800000
    s_mov_b32 s{sONE}, 0x3f803f80
    v_mov_b32 v10, -1
    v_mov_b32 v11, -1
    v_mov_b32 v12, -1
    v_mov_b32 v13, -1
    v_lshlrev_b32 v{vT0}, 4, v0
    ds_write_b128 v{vT0}, v[10:13] offset:{MLB}
    ds_write_b128 v{vT0}, v[10:13] offset:{MLB + max(0, 9216 - NW*1024)}
    s_mov_b32 s6, 0x{tab & 0xffffffff:08x}
    s_mov_b32 s7, 0x{tab >> 32:x}
    s_lshl_b32 s{sT0}, s{sW}, 2
    s_lshr_b64 s[6:7], s[6:7], s{sT0}
    s_and_b32 s{sD}, s6, 15
    s_cmp_ge_u32 s{sD}, 12
    s_cbranch_scc0 L_data
    """)
    hAq, hAc, hTr, hAw, hM, hLa, hOne, hFl = 10, 11, 12, 13, 14, 15, 16, 17
    hX, hMl = 18, 19
    ACC = 20; D = 28; XF = 36; PF = 44; ML = 48; hSt = 50; hDum = 51; RQ = 52; WVO = 64; FA = 88; DW = 112
    NVH = 160
    a(f"""
    s_sub_u32 s{sD}, s{sD}, 12
    v_mul_u32_u24 v{vT0}, {XS}, v{vN}
    ds_write_b128 v{vT0}, v[10:13] offset:{QKB+192}
    v_and_b32 v{vT0}, 31, v{vL}
    v_lshlrev_b32 v{vT0}, 2, v{vT0}
    ds_write_b32 v{vT0}, v5 offset:{FLB}
    """)
    def stageA(base, sWA=sWA):
        a(f"s_lshl_b32 s{sT0}, s{sD}, 6")
        for j in range(6):
            a(f"s_add_u32 m0, s{sT2}, {base + 1024*j}")
            if j: a(f"s_add_u32 s{sT0}, s{sT0}, 3072")
            a(f"buffer_load_dwordx4 v{hAc}, s[{sWA}:{sWA+3}], s{sT0} offen lds")
    def stageB(base, sWB=sWB):
        a(f"s_add_u32 m0, s{sT2}, {base + 18432}")
        a(f"s_add_u32 s{sT0}, s{sT2}, 4096")
        for j in range(4):
            a(f"buffer_load_dwordx4 v{vLin}, s[{sWB}:{sWB+3}], s{sT2} offen offset:{1024*j} lds")
        a(f"s_add_u32 m0, s{sT2}, {base + 18432 + 4096}")
        for j in range(2):
            a(f"buffer_load_dwordx4 v{vLin}, s[{sWB}:{sWB+3}], s{sT0} offen offset:{1024*j} lds")
    a(f"""
    v_mul_u32_u24 v{hAq}, 192, v{vN}
    v_lshl_add_u32 v{hAq}, v{vG}, 4, v{hAq}
    v_lshrrev_b32 v{vT0}, 2, v{vL}
    v_and_b32 v{vT1}, 3, v{vL}
    v_mul_u32_u24 v{hAc}, 192, v{vT0}
    v_lshl_add_u32 v{hAc}, v{vT1}, 4, v{hAc}
    s_mul_i32 s{sT2}, s{sD}, 6144
    s_add_u32 s{sC}, s{sD}, {o['nd']}
    s_waitcnt lgkmcnt(0)
    """)
    srd(a, sQ, 16, 3072)
    for kk in range(3):
        a(f"buffer_load_dwordx4 v[{RQ+4*kk}:{RQ+4*kk+3}], v{hAq}, s[{sQ}:{sQ+3}], 0 offen offset:{64*kk}")
    if o["touch"]:
        a(f"""
        s_cmp_lg_u32 s{sD}, 0
        s_cbranch_scc1 L_notouch
        s_mov_b64 exec, 1
        global_load_dword v{hDum}, v5, s[24:25]
        global_load_dword v{hDum}, v5, s[26:27]
        global_load_dword v{hDum}, v5, s[28:29]
        global_load_dword v{hDum}, v5, s[30:31]
        global_load_dword v{hDum}, v5, s[34:35]
        s_mov_b64 exec, -1
        L_notouch:
        """)
    srd(a, sWA, 22, 18432)
    stageA(STA)
    a("s_barrier")
    stamp(1)
    a("s_branch L_helper2")
    a("L_data:")
    vAf0, vAf1a, vAf1b = 10, 11, 12
    vXw0, vXw1, vXr = 13, 14, 15
    vCw0, vCw1, vCr, vCp, vCml = 16, 17, 18, 19, 20
    vStW, vStR, vRS = 21, 22, 23
    vA1, vA2, vB1, vB2 = 24, 25, 26, 27
    QK = 28; F = 40; R1 = 64; Ra = 76; Rb = 88; XT = 100; AFa = 108; AFb = 120; S = 132; C1 = 140; MN = 148
    NVD = 156
    def offsets():
        a(f"""
        s_mul_i32 s{sO1}, s{sU}, 1536
        s_mul_hi_u32 s{sT0}, s{sU}, 0xaaaaaab
        s_mul_i32 s{sT1}, s{sT0}, 24
        s_sub_u32 s{sT1}, s{sU}, s{sT1}
        s_mul_i32 s{sOa}, s{sT0}, 147456
        s_mul_i32 s{sT1}, s{sT1}, 3072
        s_add_u32 s{sOa}, s{sOa}, s{sT1}
        s_add_u32 s{sOb}, s{sOa}, 73728
        """)
    def issue_f1():
        a(f"""
        buffer_load_dwordx4 v[{R1}:{R1+3}], v{vAf1a}, s[{sF1}:{sF1+3}], s{sO1} offen {o['f1flags']}
        buffer_load_dwordx4 v[{R1+4}:{R1+7}], v{vAf1a}, s[{sF1}:{sF1+3}], s{sO1} offen offset:64 {o['f1flags']}
        buffer_load_dwordx4 v[{R1+8}:{R1+11}], v{vAf1b}, s[{sF1}:{sF1+3}], s{sO1} offen {o['f1flags']}
        """)
    def issue_t(R, so):
        for p, j in enumerate((0, 2, 1)):
            a(f"buffer_load_dwordx4 v[{R+4*p}:{R+4*p+3}], v{vAf0}, s[{sF0}:{sF0+3}], s{so} offen offset:{128*j} {o['f0flags']}")
    a(f"""
    v_lshrrev_b32 v{vT0}, 3, v{vL}
    v_and_b32 v{vT1}, 7, v{vL}
    v_lshlrev_b32 v{vT2}, 4, v{vT1}
    v_mul_u32_u24 v{vAf1a}, 192, v{vT0}
    v_lshl_add_u32 v{vAf0}, v{vAf1a}, 1, v{vT2}
    v_cmp_gt_u32 s[{sME}:{sME+1}], 4, v{vT1}
    v_add_u32 v{vT3}, 128, v{vT2}
    v_add_u32 v{vAf1b}, -64, v{vT2}
    v_cndmask_b32 v{vAf1b}, v{vAf1b}, v{vT3}, s[{sME}:{sME+1}]
    v_add_u32 v{vAf1b}, v{vAf1b}, v{vAf1a}
    v_add_u32 v{vAf1a}, v{vAf1a}, v{vT2}
    s_mul_i32 s{sU}, s2, 18
    s_add_u32 s{sU}, s{sU}, s{sD}
    """)
    offsets()
    a("s_waitcnt lgkmcnt(0)")
    srd(a, sF1, 20, 7077888); srd(a, sF0, 18, 28311552)
    a("s_setprio 2\ns_barrier")
    stamp(1)
    issue_f1(); issue_t(Ra, sOa); issue_t(Rb, sOb)
    srd(a, sWS, 34, 0x10000000)
    srd(a, sQ, 16, 3072)
    a(f"""
    s_add_u32 s6, s34, {EPOCH_OFF}
    s_addc_u32 s7, s35, 0
    s_load_dword s{sEP}, s[6:7], 0
    v_mul_u32_u24 v{vXw0}, {2*XS}, v{vT0}
    v_add_u32 v{vXw0}, v{vXw0}, v{vT2}
    v_add_u32 v{vT3}, 128, v{vXw0}
    v_add_u32 v{vXw1}, 144, v{vXw0}
    v_cndmask_b32 v{vXw1}, v{vXw1}, v{vT3}, s[{sME}:{sME+1}]
    v_mul_u32_u24 v{vXr}, {XS}, v{vN}
    v_lshl_add_u32 v{vXr}, v{vG}, 4, v{vXr}
    v_and_b32 v{vT0}, 1, v{vL}
    v_cmp_eq_u32 s[{sMQ}:{sMQ+1}], 1, v{vT0}
    s_lshl_b32 s{sT0}, s{sD}, 8
    s_add_u32 s{sT0}, s{sT0}, {STB}
    v_lshlrev_b32 v{vT0}, 7, v{vT0}
    v_and_b32 v{vT1}, 60, v{vL}
    v_add3_u32 v{vStW}, v{vT0}, v{vT1}, s{sT0}
    v_lshlrev_b32 v{vStR}, 4, v{vG}
    v_add_u32 v{vStR}, s{sT0}, v{vStR}
    s_mov_b32 s{sIT}, 0
    s_mov_b32 s{sC}, s{sD}
    """)
    stamp(2)
    a("L_dloop:")
    a(f"""
    v_mov_b32 v{vT0}, 1
    s_waitcnt vmcnt(6)
    s_mov_b64 exec, 1
    ds_add_rtn_u32 v{vT1}, v5, v{vT0} offset:{FLB+F_CNT}
    s_mov_b64 exec, -1
    """)
    for i in range(12):
        a(f"v_lshlrev_b32 v{F+2*i}, 16, v{R1+i}")
        a(f"v_and_b32 v{F+2*i+1}, 0xffff0000, v{R1+i}")
    lr = lab("noring")
    a(f"""
    s_waitcnt lgkmcnt(0)
    v_readfirstlane_b32 s{sK}, v{vT1}
    v_lshlrev_b32 v{vCml}, 3, v{vL}
    s_cmp_lt_u32 s{sK}, {NSLOT}
    s_cselect_b32 s{sT0}, 0, {NSLOT}
    s_cbranch_scc1 {lr}
    """)
    wait_flags3(F_RING, XT)
    a(f"""
    {lr}:
    s_sub_u32 s{sT0}, s{sK}, s{sT0}
    s_mul_i32 s{sT0}, s{sT0}, {SLOT}
    s_add_u32 s{sT0}, s{sT0}, {SLB}
    s_lshl_b32 s{sT1}, s{sK}, 9
    v_add_u32 v{vCw0}, s{sT0}, v{vXw0}
    v_add_u32 v{vCw1}, s{sT0}, v{vXw1}
    v_add_u32 v{vCr}, s{sT0}, v{vXr}
    v_add_u32 v{vCp}, s{sT0}, v{vLin}
    v_add_u32 v{vCml}, s{sT1}, v{vCml}
    s_mul_i32 s{sU}, s2, 18
    s_add_u32 s{sU}, s{sU}, s{sK}
    s_add_u32 s{sU}, s{sU}, {o['nd']}
    """)
    offsets()
    def fuse(R, p, T):
        r = R + 4 * p
        for i in range(4):
            a(f"v_dot2_f32_bf16 v{XT+2*i}, v{r+i}, s{sLO}, v{F+8*p+2*i}")
            a(f"v_dot2_f32_bf16 v{XT+2*i+1}, v{r+i}, s{sHI}, v{F+8*p+2*i+1}")
        for i in range(4):
            a(f"v_cvt_pk_bf16_f32 v{r+i}, v{XT+2*i}, v{XT+2*i+1}")
        va, off = ((vCw0, 0), (vCw0, XS + 64), (vCw1, 0))[p]
        a(f"ds_write_b128 v{va}, v[{r}:{r+3}] offset:{T*16*XS + off}")
    def stats_piece(R, p, s1, s2, first):
        r = R + 4 * p
        for i in range(4):
            c1 = "0" if (first and i == 0) else f"v{s1}"
            c2 = "0" if (first and i == 0) else f"v{s2}"
            a(f"v_dot2_f32_bf16 v{s1}, v{r+i}, s{sONE}, {c1}")
            a(f"v_dot2_f32_bf16 v{s2}, v{r+i}, v{r+i}, {c2}")
    def areads(AF, T):
        for kk in range(3):
            a(f"ds_read_b128 v[{AF+4*kk}:{AF+4*kk+3}], v{vCr} offset:{T*16*XS + kk*64}")
    def sreads(T):
        a(f"ds_read_b128 v[{C1+4*T}:{C1+4*T+3}], v{vStR} offset:{T*64}")
        a(f"ds_read_b128 v[{MN+4*T}:{MN+4*T+3}], v{vStR} offset:{128+T*64}")
    def smfma(AF, T):
        for kk in range(3):
            c = "0" if kk == 0 else f"v[{S+4*T}:{S+4*T+3}]"
            a(f"v_mfma_f32_16x16x32_bf16 v[{S+4*T}:{S+4*T+3}], v[{AF+4*kk}:{AF+4*kk+3}], v[{QK+4*kk}:{QK+4*kk+3}], {c}")
    def zcalc(T):
        for r in range(4):
            a(f"v_fma_f32 v{S+4*T+r}, -v{MN+4*T+r}, v{vRS}, v{S+4*T+r}")
        for r in (0, 2):
            a(f"v_pk_mul_f32 v[{S+4*T+r}:{S+4*T+r+1}], v[{S+4*T+r}:{S+4*T+r+1}], v[{C1+4*T+r}:{C1+4*T+r+1}]")
    def vwait(T, p):
        if T == 0:
            a(f"s_waitcnt vmcnt({5-p})")
        else:
            l = lab("w")
            a(f"""
            s_waitcnt vmcnt({8-p})
            s_cbranch_scc0 {l}
            s_waitcnt vmcnt({2-p})
            {l}:
            """)
    def tile(R, T, AF):
        vwait(T, 0)
        fuse(R, 0, T); stats_piece(R, 0, vA1, vA2, True)
        vwait(T, 1)
        fuse(R, 1, T); stats_piece(R, 1, vB1, vB2, True)
        a(f"""
        v_cndmask_b32 v{vT0}, v{vA1}, v{vB1}, s[{sME}:{sME+1}]
        v_cndmask_b32 v{vT1}, v{vA2}, v{vB2}, s[{sME}:{sME+1}]
        v_cndmask_b32 v{vA1}, v{vB1}, v{vA1}, s[{sME}:{sME+1}]
        v_cndmask_b32 v{vA2}, v{vB2}, v{vA2}, s[{sME}:{sME+1}]
        v_add_f32_dpp v{vA1}, v{vT0}, v{vA1} row_half_mirror row_mask:0xf bank_mask:0xf
        v_add_f32_dpp v{vA2}, v{vT1}, v{vA2} row_half_mirror row_mask:0xf bank_mask:0xf
        v_mov_b32 v{vT1}, 0x{f2u(1/96):08x}
        """)
        vwait(T, 2)
        if T == 1: stamp(4)
        fuse(R, 2, T)
        areads(AF, T)
        stats_piece(R, 2, vA1, vA2, False)
        l = lab("ni")
        a(f"s_cbranch_scc1 {l}")
        if T == 0:
            issue_f1(); issue_t(Ra, sOa)
        else:
            issue_t(Rb, sOb)
        a(f"""
        {l}:
        s_nop 1
        v_add_f32_dpp v{vA1}, v{vA1}, v{vA1} quad_perm:[1,0,3,2] row_mask:0xf bank_mask:0xf
        v_add_f32_dpp v{vA2}, v{vA2}, v{vA2} quad_perm:[1,0,3,2] row_mask:0xf bank_mask:0xf
        v_add_f32_dpp v{vA1}, v{vA1}, v{vA1} quad_perm:[2,3,0,1] row_mask:0xf bank_mask:0xf
        v_add_f32_dpp v{vA2}, v{vA2}, v{vA2} quad_perm:[2,3,0,1] row_mask:0xf bank_mask:0xf
        v_mul_f32 v{vA1}, v{vT1}, v{vA1}
        v_mul_f32 v{vT0}, v{vA1}, v{vA1}
        v_fma_f32 v{vA2}, v{vA2}, v{vT1}, -v{vT0}
        """)
        sd_mimic(a, vA2, vT0)
        a(f"""
        v_rcp_f32 v{vA2}, v{vA2}
        s_waitcnt lgkmcnt(0)
        v_mul_f32 v{vA2}, 0x{f2u(CONST):08x}, v{vA2}
        v_cndmask_b32 v{vA1}, v{vA2}, v{vA1}, s[{sMQ}:{sMQ+1}]
        ds_write_b32 v{vStW}, v{vA1} offset:{T*64}
        """)
        sreads(T)
        smfma(AF, T)
    a(f"s_cmp_ge_u32 s{sK}, {18 - o['nd']}")
    tile(Ra, 0, AFa)
    a("s_waitcnt lgkmcnt(0)")
    zcalc(0)
    a(f"""
    v_max_f32 v{vT2}, v{S}, v{S+1}
    v_max3_f32 v{vT2}, v{vT2}, v{S+2}, v{S+3}
    """)
    tile(Rb, 1, AFb)
    lq = lab("qk")
    a(f"""
    s_cmp_lg_u32 s{sIT}, 0
    s_cbranch_scc1 L_skip_first
    v_mul_u32_u24 v{vT1}, {XS}, v{vN}
    s_branch {lq}_in
    {lq}:
    s_sleep 1
    """)
    spin_guard()
    a(f"""
    {lq}_in:
    ds_read_b128 v[{XT}:{XT+3}], v{vT1} offset:{QKB+192}
    """)
    for kk in range(3):
        a(f"ds_read_b128 v[{QK+4*kk}:{QK+4*kk+3}], v{vXr} offset:{QKB + kk*64}")
    a(f"""
    s_waitcnt lgkmcnt(0)
    v_max_u32 v{vT0}, v{XT}, v{XT+1}
    v_max_u32 v{vT0}, v{vT0}, v{XT+2}
    v_cmp_eq_u32 vcc, -1, v{vT0}
    s_cbranch_vccnz {lq}
    v_add_f32 v{vRS}, v{XT}, v{XT+1}
    v_add_f32 v{vRS}, v{vRS}, v{XT+2}
    """)
    stamp(3)
    smfma(AFa, 0); smfma(AFb, 1)
    zcalc(0)
    a(f"""
    v_max_f32 v{vT2}, v{S}, v{S+1}
    v_max3_f32 v{vT2}, v{vT2}, v{S+2}, v{S+3}
    L_skip_first:
    s_waitcnt lgkmcnt(0)
    s_nop 4
    """)
    zcalc(1)
    a(f"""
    v_max3_f32 v{vT2}, v{vT2}, v{S+4}, v{S+5}
    v_max3_f32 v{vT2}, v{vT2}, v{S+6}, v{S+7}
    v_mov_b32 v{vT0}, v{vT2}
    v_permlane32_swap_b32 v{vT2}, v{vT0}
    v_max_f32 v{vT2}, v{vT2}, v{vT0}
    v_mov_b32 v{vT0}, v{vT2}
    v_permlane16_swap_b32 v{vT2}, v{vT0}
    v_max_f32 v{vT2}, v{vT2}, v{vT0}
    """)
    for i in range(0, 8, 2):
        a(f"v_pk_add_f32 v[{S+i}:{S+i+1}], v[{S+i}:{S+i+1}], v[{vT2}:{vT3}] op_sel_hi:[1,0] neg_lo:[0,1] neg_hi:[0,1]")
    for i in range(8): a(f"v_exp_f32 v{S+i}, v{S+i}")
    for i in range(0, 8, 2):
        a(f"v_pk_mul_f32 v[{C1+i}:{C1+i+1}], v[{S+i}:{S+i+1}], v[{C1+i}:{C1+i+1}]")
    for i in range(4): a(f"v_cvt_pk_bf16_f32 v{XT+i}, v{C1+2*i}, v{C1+2*i+1}")
    a(f"""
    ds_write_b128 v{vCp}, v[{XT}:{XT+3}] offset:{32*XS}
    v_pk_add_f32 v[{S}:{S+1}], v[{S}:{S+1}], v[{S+2}:{S+3}]
    v_pk_add_f32 v[{S+4}:{S+5}], v[{S+4}:{S+5}], v[{S+6}:{S+7}]
    v_min_u32 v{vT2}, -2, v{vT2}
    v_pk_add_f32 v[{S}:{S+1}], v[{S}:{S+1}], v[{S+4}:{S+5}]
    v_add_f32 v{vT3}, v{S}, v{S+1}
    ds_write_b64 v{vCml}, v[{vT2}:{vT3}] offset:{MLB}
    s_add_u32 s{sIT}, s{sIT}, 1
    """)
    if stamps:
        a(f"s_cmp_eq_u32 s{sIT}, 2\ns_cbranch_scc0 L_nost")
        stamp(8)
        a("L_nost:")
    a(f"""
    s_cmp_lt_u32 s{sK}, {18 - o['nd']}
    s_cbranch_scc1 L_dloop
    """)
    stamp(5)
    a(f"""
    s_cmp_ge_u32 s{sC}, 8
    s_cbranch_scc1 L_fin
    L_cons:
    s_cmp_ge_u32 s2, 96
    s_cbranch_scc1 L_fin
    s_setprio 0
    """)
    srd(a, sOUT, 30, 3072)
    G0, G1 = 28, 32
    O = 36
    a(f"""
    s_mul_i32 s{sTAG}, s{sEP}, 0x9E3779B1
    s_add_u32 s{sTAG}, s{sTAG}, 0x7F4A7C15
    s_lshl_b32 s{sT0}, s2, 14
    s_lshl_b32 s{sT1}, s{sC}, 11
    s_add_u32 s{sOa}, s{sT0}, s{sT1}
    s_lshl_b32 s{sOb}, s2, 5
    v_lshlrev_b32 v10, 1, v{vN}
    buffer_load_ushort v11, v10, s[{sQ}:{sQ+3}], s{sOb} offen
    """)
    if o["pretouch"]:
        a(f"buffer_load_dword v12, v5, s[{sWS}:{sWS+3}], s{sOa} offen sc1")
        a(f"buffer_load_ushort v13, v10, s[{sOUT}:{sOUT+3}], s{sOb} offen")
    wait_flags3(F_ACC, 40, sleep=2)
    lp = lab("poll")
    a(f"{lp}:")
    spin_guard()
    a(f"""
    buffer_load_dwordx4 v[{G0}:{G0+3}], v{vLin}, s[{sWS}:{sWS+3}], s{sOa} offen sc1
    buffer_load_dwordx4 v[{G1}:{G1+3}], v{vLin}, s[{sWS}:{sWS+3}], s{sOa} offen offset:1024 sc1
    s_waitcnt vmcnt(0)
    v_bitop3_b32 v{vT0}, v{G0}, v{G0+1}, v{G0+2} bitop3:0x96
    v_bitop3_b32 v{vT1}, v{G1}, v{G1+1}, v{G1+2} bitop3:0x96
    v_bitop3_b32 v{vT0}, v{vT0}, v{G0+3}, s{sTAG} bitop3:0x96
    v_bitop3_b32 v{vT1}, v{vT1}, v{G1+3}, s{sTAG} bitop3:0x96
    v_xor_b32_dpp v{vT2}, v{G0+2}, v{G0+2} quad_perm:[1,2,3,0] row_mask:0xf bank_mask:0xf
    v_xor_b32_dpp v{vT3}, v{G1+2}, v{G1+2} quad_perm:[1,2,3,0] row_mask:0xf bank_mask:0xf
    v_or3_b32 v{vT0}, v{vT0}, v{vT1}, v{vT2}
    v_or_b32 v{vT0}, v{vT0}, v{vT3}
    v_cmp_ne_u32 vcc, 0, v{vT0}
    s_cbranch_vccnz {lp}
    """)
    stamp(1)
    a(f"""
    v_max_f32 v12, v{G0+2}, v{G1+2}
    v_lshlrev_b32 v16, 16, v{G0}
    v_and_b32 v17, 0xffff0000, v{G0}
    v_max_f32_dpp v12, v12, v12 row_ror:4 row_mask:0xf bank_mask:0xf
    v_lshlrev_b32 v18, 16, v{G0+1}
    v_and_b32 v19, 0xffff0000, v{G0+1}
    v_max_f32_dpp v12, v12, v12 row_ror:8 row_mask:0xf bank_mask:0xf
    v_lshlrev_b32 v20, 16, v{G1}
    v_mov_b32 v13, v12
    v_and_b32 v21, 0xffff0000, v{G1}
    v_lshlrev_b32 v22, 16, v{G1+1}
    v_permlane32_swap_b32 v12, v13
    v_max_f32 v12, v12, v13
    v_mov_b32 v13, v12
    v_and_b32 v23, 0xffff0000, v{G1+1}
    v_permlane16_swap_b32 v12, v13
    v_max_f32 v12, v12, v13
    v_sub_f32 v14, v{G0+2}, v12
    v_sub_f32 v15, v{G1+2}, v12
    v_exp_f32 v14, v14
    v_exp_f32 v15, v15
    """)
    for r in range(4): a(f"v_mul_f32 v{O+r}, v14, v{16+r}")
    for r in range(4): a(f"v_fmac_f32 v{O+r}, v15, v{20+r}")
    a(f"v_add_f32 v13, v14, v15")
    regs = [O, O+1, O+2, O+3, 13]
    for rr in (4, 8):
        for r in regs: a(f"v_add_f32_dpp v{r}, v{r}, v{r} row_ror:{rr} row_mask:0xf bank_mask:0xf")
    for sw in ("32", "16"):
        for i, r in enumerate(regs): a(f"v_mov_b32 v{16+i}, v{r}")
        for i, r in enumerate(regs): a(f"v_permlane{sw}_swap_b32 v{r}, v{16+i}")
        for i, r in enumerate(regs): a(f"v_add_f32 v{r}, v{r}, v{16+i}")
    a(f"""
    s_lshl_b32 s{sT0}, s{sC}, 6
    v_add_u32 v{vT0}, s{sT0}, v{vLin}
    s_lshl_b32 s{sT0}, s{sC}, 3
    v_mov_b32 v{vT1}, s{sT0}
    v_mov_b32 v{vT2}, 1
    s_mov_b64 exec, 15
    ds_write_b128 v{vT0}, v[{O}:{O+3}] offset:{CNB}
    s_mov_b64 exec, 1
    ds_write_b64 v{vT1}, v[12:13] offset:{CNB+512}
    ds_add_rtn_u32 v{vT3}, v5, v{vT2} offset:{FLB+F_CC}
    s_mov_b64 exec, -1
    v_lshlrev_b32 v{vT0}, 2, v{vL}
    v_lshlrev_b32 v{vT1}, 3, v{vG}
    ds_read_b32 v16, v{vT0} offset:{CNB}
    ds_read_b32 v17, v{vT0} offset:{CNB+256}
    ds_read_b64 v[18:19], v{vT1} offset:{CNB+512}
    ds_read_b64 v[20:21], v{vT1} offset:{CNB+512+32}
    s_waitcnt lgkmcnt(0)
    v_readfirstlane_b32 s{sT0}, v{vT3}
    s_cmp_lg_u32 s{sT0}, 7
    s_cbranch_scc1 L_fin
    v_max_f32 v12, v18, v20
    v_mov_b32 v13, v12
    v_permlane32_swap_b32 v12, v13
    v_max_f32 v12, v12, v13
    v_mov_b32 v13, v12
    v_permlane16_swap_b32 v12, v13
    v_max_f32 v12, v12, v13
    v_sub_f32 v18, v18, v12
    v_sub_f32 v20, v20, v12
    v_exp_f32 v18, v18
    v_exp_f32 v20, v20
    v_mul_f32 v16, v16, v18
    v_mul_f32 v19, v19, v18
    v_fmac_f32 v16, v17, v20
    v_fmac_f32 v19, v21, v20
    v_mov_b32 v13, v16
    v_mov_b32 v14, v19
    v_permlane32_swap_b32 v16, v13
    v_permlane32_swap_b32 v19, v14
    v_add_f32 v16, v16, v13
    v_add_f32 v19, v19, v14
    v_mov_b32 v13, v16
    v_mov_b32 v14, v19
    v_permlane16_swap_b32 v16, v13
    v_permlane16_swap_b32 v19, v14
    v_add_f32 v19, v19, v14
    v_add_f32 v16, v16, v13
    v_rcp_f32 v19, v19
    v_lshlrev_b32 v11, 16, v11
    v_fma_f32 v16, v16, v19, v11
    v_cvt_pk_bf16_f32 v16, v16, v16
    s_mov_b64 exec, 0xffff
    buffer_store_short v16, v10, s[{sOUT}:{sOUT+3}], s{sOb} offen
    s_cmp_lg_u32 s2, 0
    s_cbranch_scc1 L_fin
    s_add_u32 s{sEP}, s{sEP}, 1
    v_mov_b32 v{vT0}, s{sEP}
    v_mov_b32 v{vT1}, {EPOCH_OFF}
    s_mov_b64 exec, 1
    buffer_store_dword v{vT0}, v{vT1}, s[{sWS}:{sWS+3}], 0 offen
    s_branch L_fin
    """)
    a("L_helper2:")
    srd(a, sWB, 24, 18432)
    srd(a, sWS, 34, 0x10000000)
    a(f"""
    s_add_u32 s6, s34, {EPOCH_OFF}
    s_addc_u32 s7, s35, 0
    s_load_dword s{sEP}, s[6:7], 0
    v_lshrrev_b32 v{vT0}, 2, v{vN}
    v_lshl_add_u32 v{vT0}, v{vG}, 3, v{vT0}
    v_lshlrev_b32 v{hTr}, 6, v{vT0}
    v_lshl_add_u32 v{hTr}, v{vT1}, 3, v{hTr}
    v_add_u32 v{hTr}, s{sT2}, v{hTr}
    v_add_u32 v{hX}, {STA-STG}, v{hTr}
    v_mov_b32 v{hOne}, 1
    s_lshl_b32 s{sT0}, s{sD}, 2
    v_mov_b32 v{hFl}, s{sT0}
    s_waitcnt vmcnt(6)
    """)
    stageB(STA)
    stamp(2)
    vS1, vS2 = vT2, vT3
    for i in range(12):
        c1 = "0" if i == 0 else f"v{vS1}"
        c2 = "0" if i == 0 else f"v{vS2}"
        a(f"v_dot2_f32_bf16 v{vS1}, v{RQ+i}, s{sONE}, {c1}")
        a(f"v_dot2_f32_bf16 v{vS2}, v{RQ+i}, v{RQ+i}, {c2}")
    crossg_sum(a, vS1, vT0)
    crossg_sum(a, vS2, vT0)
    a(f"""
    v_mul_f32 v{vS1}, 0x{f2u(1/96):08x}, v{vS1}
    v_mul_f32 v{vT0}, v{vS1}, v{vS1}
    v_mov_b32 v{vT1}, 0x{f2u(1/96):08x}
    v_fma_f32 v{vS2}, v{vS2}, v{vT1}, -v{vT0}
    """)
    sd_mimic(a, vS2, vT0)
    a(f"""
    v_rcp_f32 v{vS2}, v{vS2}
    v_sub_f32 v{vS1}, 0, v{vS1}
    """)
    for i in range(12):
        a(f"v_dot2_f32_bf16 v{DW+2*i}, v{RQ+i}, s{sLO}, v{vS1}")
        a(f"v_dot2_f32_bf16 v{DW+2*i+1}, v{RQ+i}, s{sHI}, v{vS1}")
    for i in range(12):
        a(f"v_pk_mul_f32 v[{DW+2*i}:{DW+2*i+1}], v[{DW+2*i}:{DW+2*i+1}], v[{vT2}:{vT3}] op_sel:[0,1] op_sel_hi:[1,1]")
    for i in range(12):
        a(f"v_cvt_pk_bf16_f32 v{RQ+i}, v{DW+2*i}, v{DW+2*i+1}")
    def trfrags(dst, va):
        for t in range(2):
            for kk in range(3):
                for h in range(2):
                    r = dst + 12 * t + 4 * kk + 2 * h
                    a(f"ds_read_b64_tr_b16 v[{r}:{r+1}], v{va} offset:{STG + kk*2048 + h*256 + t*32}")
    def setflag(off):
        a(f"""
        s_mov_b64 exec, 1
        ds_write_b32 v{hFl}, v{hOne} offset:{FLB+off}
        s_mov_b64 exec, -1
        """)
    def exchange(src, flag):
        for i in range(4): a(f"v_cvt_pk_bf16_f32 v{PF+i}, v{src+2*i}, v{src+2*i+1}")
        a(f"ds_write_b128 v{hAw}, v[{PF}:{PF+3}] offset:{EXB}")
        a(f"ds_write_b32 v{hFl}, v{hOne} offset:{FLB+flag}")
    def gather(flag):
        l = lab("ex")
        a(f"s_branch {l}_in\n{l}:")
        spin_guard()
        a(f"{l}_in:")
        a(f"ds_read_b128 v[{XF}:{XF+3}], v5 offset:{FLB+flag}")
        for kk in range(3):
            a(f"ds_read_b128 v[{RQ+4*kk}:{RQ+4*kk+3}], v{vLin} offset:{EXB + 1024*kk}")
        a(f"""
        s_waitcnt lgkmcnt(3)
        v_min_u32 v{XF}, v{XF}, v{XF+1}
        v_min_u32 v{XF}, v{XF}, v{XF+2}
        v_cmp_eq_u32 vcc, 0, v{XF}
        s_cbranch_vccnz {l}
        s_waitcnt lgkmcnt(0)
        """)
    def mm2(Areg, Breg, dst):
        for kk in range(3):
            for t in range(2):
                c = "0" if kk == 0 else f"v[{dst+4*t}:{dst+4*t+3}]"
                a(f"v_mfma_f32_16x16x32_bf16 v[{dst+4*t}:{dst+4*t+3}], v[{Areg+12*t+4*kk}:{Areg+12*t+4*kk+3}], v[{Breg+4*kk}:{Breg+4*kk+3}], {c}")
    a(f"""
    s_lshl_b32 s{sT0}, s{sD}, 10
    v_add_u32 v{hAw}, s{sT0}, v{vLin}
    s_waitcnt vmcnt(6) lgkmcnt(0)
    """)
    trfrags(FA, hX)
    a("s_waitcnt lgkmcnt(0)")
    mm2(FA, RQ, D)
    exchange(D, F_Q)
    a(f"""
    v_mul_u32_u24 v{vT0}, 192, v{vN}
    v_lshl_add_u32 v{vT0}, v{vG}, 3, v{vT0}
    s_add_u32 s{sT0}, s{sT2}, {STA + 18432}
    v_add_u32 v{vT0}, s{sT0}, v{vT0}
    """)
    if o["wearly"]:
        srd(a, sF0, 28, 18432); srd(a, sF1, 26, 18432)
        stageB(STG, sF1); stageA(STG, sF0)
    gather(F_Q)
    a(f"s_waitcnt vmcnt({12 if o['wearly'] else 0})")
    for t in range(2):
        for kk in range(3):
            for h in range(2):
                r = FA + 12 * t + 4 * kk + 2 * h
                a(f"ds_read_b64 v[{r}:{r+1}], v{vT0} offset:{t*3072 + kk*64 + h*32}")
    a(f"""
    v_mul_u32_u24 v{vT0}, {XS}, v{vN}
    v_lshl_add_u32 v{vT1}, v{vG}, 3, v{vT0}
    s_lshl_b32 s{sT0}, s{sD}, 6
    v_add_u32 v{vT1}, s{sT0}, v{vT1}
    v_add_u32 v{vT0}, v{vT0}, v{hFl}
    s_waitcnt lgkmcnt(0)
    """)
    mm2(FA, RQ, D)
    srd(a, sWA, 28, 18432); srd(a, sWB, 26, 18432)
    for i in range(4): a(f"v_cvt_pk_bf16_f32 v{PF+i}, v{D+2*i}, v{D+2*i+1}")
    a(f"""
    ds_write_b64 v{vT1}, v[{PF}:{PF+1}] offset:{QKB}
    ds_write_b64 v{vT1}, v[{PF+2}:{PF+3}] offset:{QKB+32}
    v_dot2_f32_bf16 v{vT2}, v{PF}, s{sONE}, 0
    v_dot2_f32_bf16 v{vT2}, v{PF+1}, s{sONE}, v{vT2}
    v_dot2_f32_bf16 v{vT2}, v{PF+2}, s{sONE}, v{vT2}
    v_dot2_f32_bf16 v{vT2}, v{PF+3}, s{sONE}, v{vT2}
    """)
    crossg_sum(a, vT2, vT3)
    a(f"""
    v_min_u32 v{vT2}, -2, v{vT2}
    ds_write_b32 v{vT0}, v{vT2} offset:{QKB+192}
    s_setprio {o['wprio']}
    """)
    stamp(3)
    if not o['wearly']:
        stageB(STG); stageA(STG)
    a(f"""
    s_setprio 3
    s_mul_i32 s{sTAG}, s{sEP}, 0x9E3779B1
    s_add_u32 s{sTAG}, s{sTAG}, 0x7F4A7C15
    s_and_b32 s{sT0}, s2, 7
    s_lshl_b32 s{sT0}, s{sT0}, 5
    s_lshr_b32 s{sT1}, s2, 3
    s_add_u32 s{sT0}, s{sT0}, s{sT1}
    s_lshl_b32 s{sT0}, s{sT0}, 6
    s_lshl_b32 s{sT1}, s{sD}, 15
    s_add_u32 s{sOb}, s{sT0}, s{sT1}
    s_add_u32 s{sO1}, s{sOb}, 16384
    v_mul_u32_u24 v{hSt}, {6*16384}, v{vN}
    v_lshl_add_u32 v{hSt}, v{vG}, 4, v{hSt}
    """)
    if o["pretouch"]:
        a(f"buffer_load_dword v{hDum}, v{hSt}, s[{sWS}:{sWS+3}], s{sOb} offen sc1")
        a(f"buffer_load_dword v{hDum}, v{hSt}, s[{sWS}:{sWS+3}], s{sO1} offen sc1")
    stamp(8)
    a(f"""
    v_lshrrev_b32 v{vT0}, 2, v{vN}
    v_lshl_add_u32 v{vT0}, v{vG}, 2, v{vT0}
    v_mul_u32_u24 v{hX}, {XS}, v{vT0}
    v_and_b32 v{vT1}, 3, v{vL}
    v_lshl_add_u32 v{hX}, v{vT1}, 3, v{hX}
    s_lshl_b32 s{sT0}, s{sD}, 6
    v_add_u32 v{hX}, s{sT0}, v{hX}
    v_lshlrev_b32 v{hMl}, 3, v{vL}
    v_mov_b32 v{hM}, 0xf149f2ca
    v_mov_b32 v{hLa}, 0
    """)
    for i in range(8): a(f"v_mov_b32 v{ACC+i}, 0")
    a(f"""
    s_mov_b32 s{sK}, 0
    s_mov_b32 s{sOa}, {SLB}
    L_hloop:
    v_add_u32 v{vT2}, s{sOa}, v{hX}
    v_add_u32 v{vT3}, s{sOa}, v{vLin}
    s_branch L_hpoll_in
    L_hpoll:
    s_cmp_eq_u32 s{sK}, 17
    s_cbranch_scc1 L_hpoll_ns
    s_sleep 2
    L_hpoll_ns:
    """)
    spin_guard()
    a(f"""
    L_hpoll_in:
    ds_read_b64 v[{ML}:{ML+1}], v{hMl} offset:{MLB}
    ds_read_b128 v[{PF}:{PF+3}], v{vT3} offset:{32*XS}
    """)
    for t in range(2):
        for h in range(2):
            r = XF + 4 * t + 2 * h
            a(f"ds_read_b64_tr_b16 v[{r}:{r+1}], v{vT2} offset:{t*32 + h*16*XS}")
    a(f"""
    s_waitcnt lgkmcnt(5)
    v_cmp_eq_u32 vcc, -1, v{ML}
    s_cbranch_vccnz L_hpoll
    v_max_f32 v{vT0}, v{hM}, v{ML}
    v_sub_f32 v{hM}, v{hM}, v{vT0}
    v_sub_f32 v{ML}, v{ML}, v{vT0}
    s_waitcnt lgkmcnt(2)
    v_mfma_f32_16x16x32_bf16 v[{D}:{D+3}], v[{XF}:{XF+3}], v[{PF}:{PF+3}], 0
    v_exp_f32 v{vT2}, v{hM}
    s_waitcnt lgkmcnt(0)
    v_mfma_f32_16x16x32_bf16 v[{D+4}:{D+7}], v[{XF+4}:{XF+7}], v[{PF}:{PF+3}], 0
    v_exp_f32 v{ML}, v{ML}
    v_mov_b32 v{hM}, v{vT0}
    """)
    for i in range(0, 8, 2):
        a(f"v_pk_mul_f32 v[{ACC+i}:{ACC+i+1}], v[{ACC+i}:{ACC+i+1}], v[{vT2}:{vT3}] op_sel_hi:[1,0]")
    a(f"""
    v_mul_f32 v{hLa}, v{hLa}, v{vT2}
    v_add_u32 v{hMl}, 512, v{hMl}
    """)
    for i in range(0, 8, 2):
        a(f"v_pk_fma_f32 v[{ACC+i}:{ACC+i+1}], v[{D+i}:{D+i+1}], v[{ML}:{ML+1}], v[{ACC+i}:{ACC+i+1}] op_sel_hi:[1,0,1]")
    a(f"""
    v_fmac_f32 v{hLa}, v{ML}, v{ML+1}
    s_cmp_eq_u32 s{sK}, 17
    s_cbranch_scc1 L_hfin
    s_add_u32 s{sOa}, s{sOa}, {SLOT}
    s_cmp_eq_u32 s{sK}, {NSLOT-1}
    s_cselect_b32 s{sOa}, {SLB}, s{sOa}
    s_add_u32 s{sK}, s{sK}, 1
    s_cmp_lg_u32 s{sK}, {KW+1}
    s_cbranch_scc1 L_hloop
    ds_write_b32 v{hFl}, v{hOne} offset:{FLB+F_RING}
    s_waitcnt vmcnt(0)
    ds_write_b32 v{hFl}, v{hOne} offset:{FLB+F_WV}
    """)
    trfrags(WVO, hTr)
    wait_flags3(F_WV, XF)
    a(f"s_setprio {o['wvoprio']}")
    stamp(2)
    for half in range(3):
        for cti in range(2):
            ct = 2 * half + cti
            for kk in range(3):
                r = FA + 12 * cti + 4 * kk
                a(f"ds_read_b128 v[{r}:{r+3}], v{hAq} offset:{STG + 18432 + ct*3072 + kk*64}")
        a("s_waitcnt lgkmcnt(0)")
        for kk in range(3):
            for cti in range(2):
                ct = 2 * half + cti
                r = FA + 12 * cti + 4 * kk
                for t in range(2):
                    d = DW + 24 * t + 4 * ct
                    c = "0" if kk == 0 else f"v[{d}:{d+3}]"
                    a(f"v_mfma_f32_16x16x32_bf16 v[{d}:{d+3}], v[{r}:{r+3}], v[{WVO+12*t+4*kk}:{WVO+12*t+4*kk+3}], {c}")
    for t in range(2):
        b = DW + 24 * t
        a(f"v_pk_add_f32 v[{vT2}:{vT3}], v[{b}:{b+1}], v[{b+2}:{b+3}]")
        for i in range(4, 24, 2): a(f"v_pk_add_f32 v[{vT2}:{vT3}], v[{vT2}:{vT3}], v[{b+i}:{b+i+1}]")
        a(f"v_add_f32 v{vT2}, v{vT2}, v{vT3}")
        crossg_sum(a, vT2, vT0)
        a(f"v_mul_f32 v{vT2}, 0x{f2u(-1/96):08x}, v{vT2}")
        for i in range(0, 24, 2): a(f"v_pk_add_f32 v[{b+i}:{b+i+1}], v[{b+i}:{b+i+1}], v[{vT2}:{vT3}] op_sel_hi:[1,0]")
        for i in range(12): a(f"v_cvt_pk_bf16_f32 v{WVO+12*t+i}, v{b+2*i}, v{b+2*i+1}")
    stamp(4)
    a(f"""
    s_setprio 3
    s_branch L_hloop
    L_hfin:
    """)
    stamp(5)
    exchange(ACC, F_ACC)
    crossg_sum(a, hLa, vT0)
    a(f"""
    v_log_f32 v{vT2}, v{hLa}
    v_mul_f32 v{hLa}, 0x{f2u(CONST):08x}, v{hLa}
    v_rcp_f32 v{hLa}, v{hLa}
    v_add_f32 v{ACC+2}, v{hM}, v{vT2}
    v_add_f32 v{ACC+6}, v{hM}, v{vT2}
    v_xor_b32 v{vT3}, s{sTAG}, v{ACC+2}
    """)
    gather(F_ACC)
    mm2(WVO, RQ, D)
    for t in range(2):
        for i in (0, 2):
            a(f"v_pk_mul_f32 v[{D+4*t+i}:{D+4*t+i+1}], v[{D+4*t+i}:{D+4*t+i+1}], v[{hM}:{hLa}] op_sel:[0,1] op_sel_hi:[1,1]")
        a(f"""
        v_cvt_pk_bf16_f32 v{ACC+4*t}, v{D+4*t}, v{D+4*t+1}
        v_cvt_pk_bf16_f32 v{ACC+4*t+1}, v{D+4*t+2}, v{D+4*t+3}
        v_bitop3_b32 v{ACC+4*t+3}, v{ACC+4*t}, v{ACC+4*t+1}, v{vT3} bitop3:0x96
        buffer_store_dwordx4 v[{ACC+4*t}:{ACC+4*t+3}], v{hSt}, s[{sWS}:{sWS+3}], s{sOb if t == 0 else sO1} offen sc1
        """)
    stamp(6)
    a(f"""
    s_cmp_lt_u32 s{sC}, 8
    s_cbranch_scc1 L_cons
    L_fin:
    """)
    if stamps:
        a("s_waitcnt vmcnt(0)")
        stamp(7)
        a(f"""
        s_mul_i32 s{sT0}, s2, {NW}
        s_add_u32 s{sT0}, s{sT0}, s{sW}
        s_mul_i32 s{sT0}, s{sT0}, {8*nstamp}
        s_add_u32 s{sT0}, s{sT0}, 0x8000000
        s_sleep 127
        s_sleep 127
        s_sleep 127
        s_mov_b64 exec, 1
        """)
        for i in range(nstamp):
            a(f"""
            v_mov_b32 v2, s{SST+2*i}
            v_mov_b32 v3, s{SST+1+2*i}
            buffer_store_dwordx2 v[2:3], v5, s[{sWS}:{sWS+3}], s{sT0} offen offset:{8*i}
            """)
    a("""
    L_end:
    s_endpgm
    """)
    return a.finish(), max(NVD, NVH), 102, NW

def build(stamps=False, opts=None):
    m, mv, ms, NW = gen(stamps, opts=opts)
    k1 = NAME + "_kernel"
    out = HDR
    out += f"; @launch grid=(256,1,1) block=({64*NW},1,1) lds={LDS_TOTAL}\n"
    out += '.amdgcn_target "amdgcn-amd-amdhsa--gfx950"\n.text\n'
    out += f".set CODE_LEN, L_end - {k1} - 256\n"
    out += f".p2align 12\n.globl {k1}\n.p2align 8\n.type {k1},@function\n{k1}:\n{m}"
    out += '.section .rodata,"a"\n'
    out += kd(k1, mv, ms)
    return out

if __name__ == "__main__":
    path = sys.argv[1] if len(sys.argv) > 1 else "cdna_kernels/%s.s" % NAME
    opts = eval("dict(%s)" % (sys.argv[3] if len(sys.argv) > 3 else ""))
    open(path, "w").write(build(len(sys.argv) > 2 and sys.argv[2] == "stamps", opts))
    print("LDS", LDS_TOTAL)
```
